```python
import torch

def _softmax(x, axis=-1):
    return torch.softmax(x, dim=axis)
def _gelu(x):
    return torch.nn.functional.gelu(x, approximate="tanh")
def _silu(x):
    return torch.nn.functional.silu(x)
def _sigmoid(x):
    return torch.sigmoid(x)
def _layernorm(x, axis=-1, eps=1e-5):
    m = x.mean(dim=axis, keepdim=True)
    v = x.var(dim=axis, keepdim=True, unbiased=False)
    return (x - m) / torch.sqrt(v + eps)
def _scatter_add(tgt, idx, src, axis=0):
    return tgt.clone().index_add_(axis, idx, src)
def _segment_sum(src, seg, n):
    out = torch.zeros((n,) + src.shape[1:], dtype=src.dtype)
    return out.index_add_(0, seg, src)
def _pad(x, pw):
    flat = tuple(v for pair in reversed(pw) for v in pair)
    return torch.nn.functional.pad(x, flat)

kernel_name = 'interleave_layers__sliding_local_dilated__dense_activation_squared_relu__prompt'

def setup_inputs():

    _w = (lambda a: (lambda t: t.to(torch.bfloat16) if t.is_floating_point() else t)(torch.as_tensor(a)))
    def _A_setup():
        B, S, D = 1, 2048, 640
        return {
            "x": _w((lambda *s: torch.randn(*s, dtype=torch.bfloat16) * 0.05)(B, S, D)),
            "wqkv": _w((lambda *s: torch.randn(*s, dtype=torch.bfloat16) * 0.05)(D, 3 * D)),
            "wo": _w((lambda *s: torch.randn(*s, dtype=torch.bfloat16) * 0.05)(D, D)),
        }
    _A_in = _A_setup()

    def _B_setup():
        B, S, D, F = 1, 2048, 640, 1728
        return {
            "x": _w((lambda *s: torch.randn(*s, dtype=torch.bfloat16) * 0.05)(B, S, D)),
            "w1": _w((lambda *s: torch.randn(*s, dtype=torch.bfloat16) * 0.05)(D, F)),
            "b1": _w((lambda *s: torch.randn(*s, dtype=torch.bfloat16) * 0.2)(F)),
            "w2": _w((lambda *s: torch.randn(*s, dtype=torch.bfloat16) * 0.05)(F, D)),
            "b2": _w((lambda *s: torch.randn(*s, dtype=torch.bfloat16) * 0.8)(D)),
        }
    _B_in = _B_setup()

    return {
        "A_x": _A_in["x"],
        "A_wqkv": _A_in["wqkv"],
        "A_wo": _A_in["wo"],
        "B_x": _B_in["x"],
        "B_w1": _B_in["w1"],
        "B_b1": _B_in["b1"],
        "B_w2": _B_in["w2"],
        "B_b2": _B_in["b2"],
    }

def reference(A_x, A_wqkv, A_wo, B_x, B_w1, B_b1, B_w2, B_b2):
    def _A_ref(x, wqkv, wo):
        B, S, D = x.shape
        H = 32; Dh = D // H
        W, dil = 8, 2
        qkv = (lambda x, *d: x.permute(*d))((x @ wqkv).reshape(B, S, 3, H, Dh), 2, 0, 3, 1, 4)
        q, k, v = qkv[0], qkv[1], qkv[2]
        scale = Dh ** -0.5
        pos = torch.arange(S)
        off = torch.arange(W) * dil
        idx = pos[:, None] - off[None, :]
        mask = idx >= 0
        idx_c = torch.where(mask, idx, 0).reshape(-1)
        kg = k[:, :, idx_c, :].reshape(B, H, S, W, Dh)
        vg = v[:, :, idx_c, :].reshape(B, H, S, W, Dh)
        logits = torch.einsum("bhsd,bhswd->bhsw", q, kg) * scale
        logits = torch.where(mask[None, None, :, :], logits, -1e9)
        attn = _softmax(logits, axis=-1)
        o = torch.einsum("bhsw,bhswd->bhsd", attn, vg)
        return (lambda x, *d: x.permute(*d))(o, 0, 2, 1, 3).reshape(B, S, D) @ wo

    def _B_ref(x, w1, b1, w2, b2):
        h = torch.einsum("bsd,df->bsf", x, w1) + b1
        zero = torch.zeros_like(h)
        r = torch.where(h > zero, h, zero)
        h = r * r
        out = torch.einsum("bsf,fd->bsd", h, w2) + b2
        return out

    x = A_x
    x = x + _A_ref(_layernorm(x, axis=-1), A_wqkv, A_wo)
    x = x + _B_ref(_layernorm(x, axis=-1), B_w1, B_b1, B_w2, B_b2)
    x = x + _A_ref(_layernorm(x, axis=-1), A_wqkv, A_wo)
    x = x + _B_ref(_layernorm(x, axis=-1), B_w1, B_b1, B_w2, B_b2)
    return x
```

```python
import re

_REG = re.compile(r'^(-|\|)?(?:abs\(|neg\()?([vas])(?:(\d+)|\[(\d+):(\d+)\])\)?\|?$')

def regs_of(tok):
    tok = tok.strip()
    if tok in ("vcc",): return {("s", 106), ("s", 107)}
    if tok == "vcc_lo": return {("s", 106)}
    if tok == "vcc_hi": return {("s", 107)}
    if tok == "m0": return {("s", 124)}
    if tok == "exec": return {("s", 126), ("s", 127)}
    m = _REG.match(tok)
    if not m: return set()
    f = m.group(2)
    if m.group(3) is not None:
        return {(f, int(m.group(3)))}
    return {(f, i) for i in range(int(m.group(4)), int(m.group(5)) + 1)}

TRANS = ("v_exp_f32", "v_log_f32", "v_rcp_f32", "v_rsq_f32", "v_sqrt_f32", "v_sin_f32", "v_cos_f32", "v_rcp_iflag_f32")

class Ins:
    __slots__ = ("text", "op", "ops", "mods", "kind", "dst", "src", "srcC", "srcAB", "passes", "states", "data")
    def __init__(self, text):
        self.text = text
        t = text.split(";")[0].strip()
        parts = t.split(None, 1)
        self.op = parts[0]
        rest = parts[1] if len(parts) > 1 else ""
        ops, cur, depth = [], "", 0
        for ch in rest:
            if ch in "[(": depth += 1
            elif ch in "])": depth -= 1
            if ch == "," and depth == 0:
                ops.append(cur.strip()); cur = ""
            else: cur += ch
        if cur.strip(): ops.append(cur.strip())
        mods = []
        if ops:
            last = ops[-1].split()
            ops[-1] = last[0]; mods = last[1:]
        self.ops, self.mods = ops, mods
        op = self.op
        self.dst, self.src, self.srcC, self.srcAB, self.data = set(), set(), set(), set(), set()
        self.passes = 0
        self.states = 1
        R = [regs_of(o) for o in ops]
        if op == "s_nop":
            self.kind = "nop"; self.states = int(ops[0], 0) + 1
        elif op.startswith("v_mfma"):
            self.kind = "mfma"
            self.dst = R[0]; self.srcAB = R[1] | R[2]; self.srcC = R[3]; self.src = self.srcAB | self.srcC
            self.passes = 8 if "32x32" in op else 4
        elif op.startswith("buffer_") or op.startswith("global_") or op.startswith("flat_"):
            self.kind = "vmem"
            if op.startswith("buffer_wbl2") or op.startswith("buffer_inv"):
                pass
            elif "lds" in mods or "_lds_" in op:
                self.src = set().union(*R) | {("s", 124)}
                self.kind = "vmem_lds"
            elif "_load" in op:
                self.dst = R[0]; self.src = set().union(*R[1:])
            elif "_store" in op:
                self.src = set().union(*R)
                self.data = R[0] if op.startswith("buffer_") else R[1]
            elif "_atomic" in op:
                self.src = set().union(*R)
                if "sc0" in mods: self.dst = R[0]
        elif op.startswith("ds_"):
            self.kind = "ds"
            if op.startswith("ds_read") or "permute" in op or "swizzle" in op:
                self.dst = R[0]; self.src = set().union(*R[1:]) if len(R) > 1 else set()
            else:
                self.src = set().union(*R)
        elif op.startswith("v_"):
            self.kind = "valu"
            if op.startswith("v_cmp"):
                self.dst = R[0]; self.src = set().union(*R[1:])
            elif op.startswith("v_permlane") and "swap" in op:
                self.dst = R[0] | R[1]; self.src = R[0] | R[1]
            elif op.startswith(("v_add_co", "v_sub_co", "v_addc_co", "v_subb_co", "v_subrev_co", "v_mad_u64", "v_div_scale")):
                self.dst = R[0] | R[1]; self.src = set().union(*R[2:])
            elif op == "v_nop":
                pass
            else:
                self.dst = R[0]; self.src = set().union(*R[1:]) if len(R) > 1 else set()
                if op.startswith(("v_fmac", "v_dot2c", "v_pk_fmac")): self.src |= R[0]
                if op.startswith("v_cndmask") and len(ops) == 3: self.src |= {("s", 106), ("s", 107)}
                if op.startswith("v_writelane"): self.src |= R[0]
                if op.startswith("v_dot2_"): self.srcC = R[3]; self.srcAB = R[1] | R[2]
                if op.startswith("v_dot2c"): self.srcC = R[0]; self.srcAB = R[1] | R[2]
        elif op.startswith("s_"):
            self.kind = "salu"
            if op.startswith(("s_cmp", "s_cbranch", "s_branch", "s_waitcnt", "s_barrier", "s_endpgm", "s_sleep", "s_setprio", "s_bitcmp")):
                self.src = set().union(*R) if R else set()
            else:
                self.dst = R[0] if R else set(); self.src = set().union(*R[1:]) if len(R) > 1 else set()
                if "saveexec" in op: self.dst |= {("s", 126), ("s", 127)}
        else:
            self.kind = "other"

def is_dpp(i): return i.op.endswith("_dpp") or any(m.startswith(("row_", "quad_perm", "wave_")) for m in i.mods)
def vregs(s): return {r for r in s if r[0] in "va"}
def sregs(s): return {r for r in s if r[0] == "s"}

def need(p, c):
    n = 0
    if p.kind == "valu":
        pv, ps = vregs(p.dst), sregs(p.dst)
        isdot = p.op.startswith("v_dot")
        if c.kind == "mfma" and pv & c.src: n = max(n, 3 if isdot else 2)
        if c.kind == "valu":
            if c.op.startswith(("v_readlane", "v_readfirstlane")) and pv & c.src: n = max(n, 1)
            if c.op.startswith("v_permlane") and pv & c.src: n = max(n, 2)
            if is_dpp(c) and pv & c.src: n = max(n, 2)
            if p.op.startswith(TRANS) and not c.op.startswith(TRANS) and pv & c.src: n = max(n, 1)
            if p.op.startswith(TRANS) and c.op.startswith(TRANS) and pv & c.src: n = max(n, 1)
            if ps & c.src:
                n = max(n, 4 if c.op.startswith(("v_readlane", "v_writelane")) else 2)
            if "sdwa" in p.op or any(m.startswith(("op_sel", "dst_sel")) for m in p.mods):
                if pv & (c.src | c.dst): n = max(n, 1)
            if isdot and pv & (c.src | c.dst):
                if c.op == p.op and not (pv & c.srcAB): pass
                else: n = max(n, 3)
        if isdot and c.kind in ("vmem", "ds", "vmem_lds") and pv & c.src: n = max(n, 3)
        if c.kind in ("vmem", "vmem_lds") and ps & c.src: n = max(n, 5)
        if ("s", 126) in ps or ("s", 127) in ps:
            if c.kind == "mfma": n = max(n, 4)
            if c.kind == "valu" and is_dpp(c): n = max(n, 5)
    if p.kind == "mfma":
        big = {4: 8, 8: 12}[p.passes]; ovl = {4: 6, 8: 10}[p.passes]; war = {4: 3, 8: 7}[p.passes]
        if c.kind == "mfma":
            if p.dst & c.srcAB: n = max(n, big)
            if p.dst & c.srcC:
                if not (p.dst == c.srcC and p.passes == c.passes): n = max(n, ovl)
            elif p.dst & c.dst: n = max(n, ovl)
        elif c.kind == "valu":
            if p.dst & (c.src | c.dst): n = max(n, big)
            if p.srcC & c.dst: n = max(n, war)
        elif c.kind in ("vmem", "ds", "vmem_lds"):
            if p.dst & (c.src | c.dst): n = max(n, big)
    if p.kind == "salu" and ("s", 124) in p.dst and c.kind == "vmem_lds": n = max(n, 1)
    if p.kind == "vmem" and p.data and len(p.data) >= 3:
        if p.data & c.dst: n = max(n, 2 if c.kind == "valu" else 1)
    return n

class Asm:
    def __init__(self):
        self.lines = []
    def __call__(self, text):
        for l in text.split("\n"):
            l = l.strip()
            if l: self.lines.append(l)
    def label(self, name): self.lines.append(name + ":")
    def comment(self, t): self.lines.append("; " + t)
    def raw(self, t): self.lines.append("\x00" + t)
    def finalize(self):
        out, window = [], []
        npad = 0
        for l in self.lines:
            if l.startswith("\x00"):
                out.append(l[1:]); continue
            if l.startswith(";") or l.startswith("."):
                out.append(l); continue
            if l.endswith(":") and " " not in l:
                out.append(l); continue
            c = Ins(l)
            dist, req = 0, 0
            for p in reversed(window):
                k = need(p, c) - dist
                if k > req: req = k
                dist += p.states
                if dist > 24: break
            while req > 0:
                k = min(req, 16)
                n = Ins("s_nop %d" % (k - 1)); out.append("  s_nop %d" % (k - 1)); window.append(n); req -= k; npad += 1
            out.append("  " + l); window.append(c)
            if len(window) > 40: window = window[-30:]
        self.npad = npad
        return "\n".join(out) + "\n"
```

```python
import sys
sys.path.insert(0, "dev")
from asmgen import Asm

WQ  = 0x0000000
WOP = 0x0300000
W1P = 0x0400000
W2P = 0x0700000
def XF(i): return 0x1000000 + i * 0x300000
def OF(l): return 0x2000000 + l * 0x300000
def HF(l): return 0x3000000 + l * 0x800000
def ST(i): return 0x4000000 + i * 0x20000
WS_SIZE = 0x10000000
BIG = 0x7FF00000
ONES = 0x3F803F80

class Cnt:
    def __init__(self, a, name, mx):
        self.a, self.name, self.mx, self.q = a, name, mx, []
    def issue(self, tag=None):
        self.q.append(tag)
        assert len(self.q) <= 63 or self.name != "vmcnt", "too many outstanding"
    def wait(self, tag):
        idx = max((i for i, t in enumerate(self.q) if t == tag), default=None)
        if idx is None: return
        n = len(self.q) - 1 - idx
        self.a("s_waitcnt %s(%d)" % (self.name, min(n, self.mx)))
        if n <= self.mx: self.q = self.q[idx + 1:]
        else: self.q = self.q[len(self.q) - self.mx:]
    def wait_all(self):
        self.a("s_waitcnt %s(0)" % self.name); self.q = []

def kernel_begin(a, name, nwg):
    a.raw(".globl %s\n.p2align 8\n.type %s,@function\n%s:" % (name, name, name))
    a("s_cmp_ge_u32 s2, %d" % nwg)
    a("s_cbranch_scc1 %s_end" % name)

def kernel_end(a, name):
    a.label(name + "_end")
    a("s_endpgm")

def srd(a, d, ptr_lo, size):
    a("s_mov_b32 s%d, s%d" % (d, ptr_lo))
    a("s_and_b32 s%d, s%d, 0xffff" % (d + 1, ptr_lo + 1))
    a("s_mov_b32 s%d, 0x%x" % (d + 2, size))
    a("s_mov_b32 s%d, 0x00020000" % (d + 3))

def reduce_g(a, v, tmp):
    a("v_mov_b32 v%d, v%d" % (tmp, v))
    a("v_permlane16_swap_b32 v%d, v%d" % (v, tmp))
    a("v_add_f32 v%d, v%d, v%d" % (v, v, tmp))
    a("v_mov_b32 v%d, v%d" % (tmp, v))
    a("v_permlane32_swap_b32 v%d, v%d" % (v, tmp))
    a("v_add_f32 v%d, v%d, v%d" % (v, v, tmp))

def gen_pack(a):
    name = "pack_kernel"
    kernel_begin(a, name, 264)
    a("s_load_dwordx4 s[20:23], s[0:1], 0")
    a("s_load_dwordx2 s[24:25], s[0:1], 16")
    a("s_load_dwordx2 s[26:27], s[0:1], 32")
    a("s_load_dwordx2 s[28:29], s[0:1], 48")
    a("s_load_dwordx2 s[30:31], s[0:1], 80")
    a("v_lshrrev_b32 v1, 6, v0")
    a("v_and_b32 v2, 63, v0")
    a("v_readfirstlane_b32 s16, v1")
    a("s_lshl_b32 s17, s2, 2")
    a("s_add_u32 s17, s17, s16")
    a("v_lshlrev_b32 v3, 4, v2")
    a("v_and_b32 v4, 3, v2")
    a("v_lshrrev_b32 v5, 2, v2")
    a("s_waitcnt lgkmcnt(0)")
    srd(a, 4, 30, WS_SIZE)
    a("s_cmp_ge_u32 s17, 800")
    a("s_cbranch_scc1 pack_x")
    a("s_cmp_ge_u32 s17, 256")
    a("s_cbranch_scc1 pack_not_q")
    srd(a, 8, 22, 640 * 1920 * 2)
    a("s_mov_b32 s40, 3840")
    a("s_lshr_b32 s44, s17, 4")
    a("s_lshr_b32 s45, s17, 1")
    a("s_and_b32 s45, s45, 7")
    a("s_and_b32 s46, s17, 1")
    a("s_mul_i32 s47, s46, 10")
    a("s_mov_b32 s43, 10")
    a("s_lshr_b32 s42, s17, 1")
    a("s_mul_i32 s42, s42, 20")
    a("s_add_u32 s42, s42, s47")
    a("s_lshl_b32 s42, s42, 10")
    a("s_add_u32 s42, s42, %d" % WQ)
    a("s_lshl_b32 s48, s45, 2")
    a("v_add_u32 v7, s48, v4")
    a("v_lshlrev_b32 v6, 2, v7")
    a("v_add_u32 v8, 640, v6")
    a("v_add_u32 v9, %d, v6" % (1280 - 40))
    a("v_subrev_u32 v10, 80, v6")
    a("v_cmp_gt_u32 vcc, 20, v7")
    a("v_cndmask_b32 v6, v10, v9, vcc")
    a("v_cmp_gt_u32 vcc, 10, v7")
    a("v_cndmask_b32 v6, v6, v8, vcc")
    a("s_mul_i32 s48, s44, 40")
    a("v_add_u32 v6, s48, v6")
    a("v_lshlrev_b32 v6, 1, v6")
    a("v_mov_b32 v8, 0x%x" % BIG)
    a("v_cmp_gt_u32 vcc, 30, v7")
    a("v_cndmask_b32 v6, v8, v6, vcc")
    a("s_branch pack_w_go")
    a.label("pack_not_q")
    a("s_cmp_ge_u32 s17, 480")
    a("s_cbranch_scc1 pack_not_1")
    srd(a, 8, 26, 640 * 1728 * 2)
    a("s_mov_b32 s40, 3456")
    a("s_sub_u32 s44, s17, 256")
    a("s_lshr_b32 s45, s44, 1")
    a("s_and_b32 s46, s44, 1")
    a("s_mul_i32 s47, s46, 10")
    a("s_mov_b32 s43, 10")
    a("s_mul_i32 s42, s45, 20")
    a("s_add_u32 s42, s42, s47")
    a("s_lshl_b32 s42, s42, 10")
    a("s_add_u32 s42, s42, %d" % W1P)
    a("s_branch pack_w_col")
    a.label("pack_not_1")
    a("s_cmp_ge_u32 s17, 560")
    a("s_cbranch_scc1 pack_not_o")
    srd(a, 8, 24, 640 * 640 * 2)
    a("s_mov_b32 s40, 1280")
    a("s_sub_u32 s44, s17, 480")
    a("s_lshr_b32 s45, s44, 1")
    a("s_and_b32 s46, s44, 1")
    a("s_mul_i32 s47, s46, 10")
    a("s_mov_b32 s43, 10")
    a("s_mul_i32 s42, s45, 20")
    a("s_add_u32 s42, s42, s47")
    a("s_lshl_b32 s42, s42, 10")
    a("s_add_u32 s42, s42, %d" % WOP)
    a("s_branch pack_w_col")
    a.label("pack_not_o")
    srd(a, 8, 28, 1728 * 640 * 2)
    a("s_mov_b32 s40, 1280")
    a("s_sub_u32 s44, s17, 560")
    a("s_mul_i32 s45, s44, 43691")
    a("s_lshr_b32 s45, s45, 18")
    a("s_mul_i32 s46, s45, 6")
    a("s_sub_u32 s46, s44, s46")
    a("s_mul_i32 s47, s46, 9")
    a("s_mov_b32 s43, 9")
    a("s_mul_i32 s42, s45, 54")
    a("s_add_u32 s42, s42, s47")
    a("s_lshl_b32 s42, s42, 10")
    a("s_add_u32 s42, s42, %d" % W2P)
    a.label("pack_w_col")
    a("s_lshr_b32 s48, s45, 1")
    a("s_lshl_b32 s48, s48, 5")
    a("s_and_b32 s49, s45, 1")
    a("s_lshl_b32 s49, s49, 2")
    a("s_add_u32 s48, s48, s49")
    a("v_lshlrev_b32 v6, 3, v4")
    a("v_add_u32 v6, s48, v6")
    a("v_lshlrev_b32 v6, 1, v6")
    a("v_mov_b32 v8, 0x%x" % BIG)
    a("v_cmp_gt_u32 vcc, s40, v6")
    a("v_cndmask_b32 v6, v8, v6, vcc")
    a.label("pack_w_go")
    a("v_mul_lo_u32 v7, v5, s40")
    a("v_add_u32 v7, v7, v6")
    a("s_lshl_b32 s48, s40, 4")
    a("v_add_u32 v8, s48, v7")
    a("s_mul_i32 s41, s47, s40")
    a("s_lshl_b32 s41, s41, 5")
    a("s_lshl_b32 s49, s40, 5")
    a("s_mul_i32 s50, s16, 10240")
    a("v_lshlrev_b32 v9, 3, v2")
    a("v_add_u32 v9, s50, v9")
    a("v_lshrrev_b32 v10, 4, v2")
    a("v_lshlrev_b32 v10, 8, v10")
    a("v_and_b32 v11, 15, v2")
    a("v_lshl_add_u32 v10, v11, 3, v10")
    a("v_add_u32 v10, s50, v10")
    for b in range(10):
        if b == 9:
            a("s_cmp_eq_u32 s43, 9")
            a("s_cselect_b32 s41, 0x%x, s41" % BIG)
        a("buffer_load_dwordx2 v[%d:%d], v7, s[8:11], s41 offen" % (16 + 4 * b, 17 + 4 * b))
        a("buffer_load_dwordx2 v[%d:%d], v8, s[8:11], s41 offen" % (18 + 4 * b, 19 + 4 * b))
        a("s_add_u32 s41, s41, s49")
    for b in range(10):
        a("s_waitcnt vmcnt(%d)" % (18 - 2 * b))
        a("ds_write_b64 v9, v[%d:%d] offset:%d" % (16 + 4 * b, 17 + 4 * b, b * 1024))
        a("ds_write_b64 v9, v[%d:%d] offset:%d" % (18 + 4 * b, 19 + 4 * b, b * 1024 + 512))
    a("s_waitcnt lgkmcnt(0)")
    for b in range(10):
        a("ds_read_b64_tr_b16 v[%d:%d], v10 offset:%d" % (64 + 4 * b, 65 + 4 * b, b * 1024))
        a("ds_read_b64_tr_b16 v[%d:%d], v10 offset:%d" % (66 + 4 * b, 67 + 4 * b, b * 1024 + 128))
    for b in range(10):
        a("s_waitcnt lgkmcnt(%d)" % min(15, 18 - 2 * b))
        if b == 9:
            a("s_cmp_eq_u32 s43, 9")
            a("s_cselect_b32 s42, 0x%x, s42" % BIG)
        a("buffer_store_dwordx4 v[%d:%d], v3, s[4:7], s42 offen" % (64 + 4 * b, 67 + 4 * b))
        a("s_add_u32 s42, s42, 1024")
    a("s_branch pack_kernel_end")
    a.label("pack_x")
    srd(a, 8, 20, 2048 * 640 * 2)
    a("s_sub_u32 s44, s17, 800")
    a("s_lshr_b32 s45, s44, 1")
    a("s_and_b32 s46, s44, 1")
    a("v_and_b32 v4, 15, v2")
    a("v_lshrrev_b32 v5, 4, v2")
    a("v_mul_u32_u24 v6, 1280, v4")
    a("v_lshl_add_u32 v6, v5, 4, v6")
    a("s_mul_i32 s41, s45, 20480")
    a("s_mul_i32 s47, s46, 640")
    a("s_add_u32 s47, s47, s41")
    a("s_mul_i32 s42, s46, 10240")
    a("s_add_u32 s42, s42, s41")
    a("s_add_u32 s42, s42, %d" % XF(0))
    for b in range(10):
        a("buffer_load_dwordx4 v[%d:%d], v6, s[8:11], s47 offen offset:%d" % (16 + 4 * b, 19 + 4 * b, b * 64))
    a("v_mov_b32 v8, 0")
    a("v_mov_b32 v9, 0")
    a("v_mov_b32 v12, 0x%x" % ONES)
    for b in range(10):
        a("s_waitcnt vmcnt(%d)" % 9)
        a("buffer_store_dwordx4 v[%d:%d], v3, s[4:7], s42 offen" % (16 + 4 * b, 19 + 4 * b))
        a("s_add_u32 s42, s42, 1024")
        for k in range(4):
            a("v_dot2_f32_bf16 v8, v%d, v12, v8" % (16 + 4 * b + k))
            a("v_dot2_f32_bf16 v9, v%d, v%d, v9" % (16 + 4 * b + k, 16 + 4 * b + k))
    reduce_g(a, 8, 13)
    reduce_g(a, 9, 13)
    a("v_mov_b32 v10, 0")
    a("v_mov_b32 v11, 0")
    a("v_cmp_gt_u32 vcc, 16, v2")
    a("v_cndmask_b32 v8, 0, v8, vcc")
    a("v_cndmask_b32 v9, 0, v9, vcc")
    a("v_lshlrev_b32 v13, 6, v4")
    a("v_lshl_add_u32 v13, v5, 4, v13")
    a("s_lshl_b32 s42, s45, 10")
    a("s_lshl_b32 s47, s46, 5")
    a("s_add_u32 s42, s42, s47")
    a("s_add_u32 s42, s42, %d" % ST(0))
    a("s_mov_b32 exec_lo, -1")
    a("s_mov_b32 exec_hi, 0")
    a("buffer_store_dwordx4 v[8:11], v13, s[4:7], s42 offen")
    kernel_end(a, name)

def common_prologue(a, name):
    kernel_begin(a, name, 256)
    a("s_load_dwordx2 s[30:31], s[0:1], 80")
    a("s_load_dwordx2 s[32:33], s[0:1], 40")
    a("s_load_dwordx2 s[34:35], s[0:1], 56")
    a("s_load_dwordx2 s[36:37], s[0:1], 64")
    a("v_lshrrev_b32 v1, 6, v0")
    a("v_and_b32 v2, 63, v0")
    a("v_readfirstlane_b32 s16, v1")
    a("s_and_b32 s17, s2, 7")
    a("s_lshl_b32 s17, s17, 1")
    a("s_lshr_b32 s18, s2, 7")
    a("s_add_u32 s17, s17, s18")
    a("s_lshr_b32 s18, s2, 3")
    a("s_and_b32 s18, s18, 15")
    a("v_lshlrev_b32 v3, 4, v2")
    a("v_and_b32 v4, 15, v2")
    a("v_lshrrev_b32 v5, 4, v2")
    a("s_waitcnt lgkmcnt(0)")
    srd(a, 4, 30, WS_SIZE)

SLOT = 20480
NSLOT = 5
QKVB = NSLOT * SLOT
QP = 304

def gen_nsplit(a, kind, layer):
    name = "%s%d_kernel" % (kind, layer)
    qkv = kind == "qkv"
    src = XF(2 * layer) if qkv else XF(2 * layer + 1)
    st = ST(2 * layer) if qkv else ST(2 * layer + 1)
    NT = 9 if qkv else 8
    common_prologue(a, name)
    if not qkv:
        a("s_cmp_ge_u32 s18, 14")
        a("s_cbranch_scc1 %s_end" % name)
        srd(a, 8, 32, 1728 * 2)
    vm = Cnt(a, "vmcnt", 63); lg = Cnt(a, "lgkmcnt", 15)
    XB = 32; NXB = 8
    ACC = [64, 72]
    CS = 80
    BIAS = 88
    STR = 96
    RSTD = 132; MR = 141
    TMP = 150
    a("s_lshl_b32 s20, s17, 3")
    a("v_lshlrev_b32 v6, 6, v4")
    a("v_lshl_add_u32 v6, v5, 4, v6")
    for t in range(NT):
        if qkv:
            a("s_add_i32 s21, s20, %d" % (t - 1))
            if t == 0: a("s_max_i32 s21, s21, 0")
        else:
            a("s_add_u32 s21, s20, %d" % t)
        a("s_lshl_b32 s21, s21, 10")
        a("s_add_u32 s21, s21, %d" % st)
        a("buffer_load_dwordx4 v[%d:%d], v6, s[4:7], s21 offen" % (STR + 4 * t, STR + 4 * t + 3)); vm.issue("st")
    if qkv:
        a("s_lshl_b32 s22, s18, 3")
        a("s_add_u32 s22, s22, s16")
        a("s_mul_i32 s22, s22, 20480")
        a("s_add_u32 s22, s22, %d" % WQ)
        a("s_add_u32 s23, s22, %d" % (4 * 20480))
    else:
        a("s_lshl_b32 s24, s18, 2")
        a("s_add_u32 s24, s24, s16")
        a("s_mul_i32 s22, s24, 40960")
        a("s_add_u32 s22, s22, %d" % W1P)
        a("s_add_u32 s23, s22, 20480")
        a("v_lshlrev_b32 v7, 4, v5")
        a("s_lshl_b32 s25, s24, 6")
        a("buffer_load_dwordx4 v[%d:%d], v7, s[8:11], s25 offen" % (TMP, TMP + 3)); vm.issue("bias")
    for j in range(20):
        for s in range(2):
            a("buffer_load_dwordx4 a[%d:%d], v3, s[4:7], s%d offen offset:%d" % ((s * 20 + j) * 4, (s * 20 + j) * 4 + 3, 22 + s, (j % 4) * 1024)); vm.issue("w")
        if j % 4 == 3:
            a("s_add_u32 s22, s22, 4096"); a("s_add_u32 s23, s23, 4096")
    a("s_mul_i32 s26, s16, 5120")
    def dma(t):
        if qkv:
            a("s_add_i32 s21, s20, %d" % (t - 1))
            if t == 0: a("s_max_i32 s21, s21, 0")
        else:
            a("s_add_u32 s21, s20, %d" % t)
        a("s_mul_i32 s21, s21, 20480")
        a("s_add_u32 s21, s21, s26")
        a("s_add_u32 s21, s21, %d" % src)
        a("s_add_u32 m0, s26, %d" % ((t % NSLOT) * SLOT))
        for k in range(4):
            a("buffer_load_dwordx4 v3, s[4:7], s21 offen offset:%d lds" % (k * 1024)); vm.issue(("x", t))
        a("s_add_u32 m0, s26, %d" % ((t % NSLOT) * SLOT + 4096))
        a("s_add_u32 s21, s21, 4096")
        a("buffer_load_dwordx4 v3, s[4:7], s21 offen lds"); vm.issue(("x", t))
    dma(0); dma(1)
    vm.wait("st")
    a("v_mov_b32 v%d, 0x%x" % (TMP + 8, 0x3727C5AC))
    for t in range(NT):
        r = STR + 4 * t
        a("v_add_f32 v%d, v%d, v%d" % (r, r, r + 2))
        a("v_add_f32 v%d, v%d, v%d" % (r + 1, r + 1, r + 3))
        reduce_g(a, r, r + 2)
        reduce_g(a, r + 1, r + 3)
        a("v_mul_f32 v%d, 0x%x, v%d" % (r, 0x3ACCCCCD, r))
        a("v_mul_f32 v%d, 0x%x, v%d" % (r + 1, 0x3ACCCCCD, r + 1))
        a("v_fma_f32 v%d, -v%d, v%d, v%d" % (r + 1, r, r, r + 1))
        a("v_max_f32 v%d, 0, v%d" % (r + 1, r + 1))
        a("v_add_f32 v%d, v%d, v%d" % (r + 1, r + 1, TMP + 8))
        a("v_rsq_f32 v%d, v%d" % (RSTD + t, r + 1))
        a("v_mul_f32 v%d, v%d, v%d" % (MR + t, r, RSTD + t))
    if not qkv:
        vm.wait("bias")
        for k in range(4):
            a("v_lshlrev_b32 v%d, 16, v%d" % (BIAS + 2 * k, TMP + k))
            a("v_and_b32 v%d, 0xffff0000, v%d" % (BIAS + 2 * k + 1, TMP + k))
    dma(2)
    a("v_add_u32 v8, %d, v3" % (3 * SLOT))
    if qkv:
        for s in range(2):
            a("s_lshl_b32 s27, s16, 2")
            a("s_add_u32 s27, s27, %d" % (16 * s))
            a("v_add_u32 v9, s27, v5")
            a("v_mul_u32_u24 v10, 13, v9")
            a("v_lshrrev_b32 v10, 6, v10")
            a("v_add_u32 v9, v9, v10")
            a("v_lshlrev_b32 v9, 3, v9")
            a("v_mul_u32_u24 v10, %d, v4" % QP)
            a("v_add_u32 v9, v9, v10")
            a("v_add_u32 v%d, %d, v9" % (11 + s, QKVB))
    else:
        a("s_mul_i32 s28, s20, %d" % (56 * 1024))
        a("s_lshl_b32 s27, s24, 10")
        a("s_add_u32 s28, s28, s27")
        a("s_add_u32 s28, s28, %d" % HF(layer))
    for k in range(4): a("v_mov_b32 v%d, 0x%x" % (TMP + k, ONES))
    vm.wait("w")
    dma(3)
    for j in range(20):
        for s in range(2):
            a("v_mfma_f32_16x16x32_bf16 v[%d:%d], a[%d:%d], v[%d:%d], %s" % (
                CS + 4 * s, CS + 4 * s + 3, (s * 20 + j) * 4, (s * 20 + j) * 4 + 3, TMP, TMP + 3,
                "0" if j == 0 else "v[%d:%d]" % (CS + 4 * s, CS + 4 * s + 3)))
    D = 6
    NS = NT * 20
    def ds_read(n):
        t, j = divmod(n, 20)
        slot = t % NSLOT
        b = XB + 4 * (n % NXB)
        if slot < 3: a("ds_read_b128 v[%d:%d], v3 offset:%d" % (b, b + 3, slot * SLOT + j * 1024))
        else: a("ds_read_b128 v[%d:%d], v8 offset:%d" % (b, b + 3, (slot - 3) * SLOT + j * 1024))
        lg.issue(("r", n))
    def epilogue_ops(t):
        acc = ACC[t % 2]
        ops = []
        if qkv:
            for s in range(2):
                def f(s=s):
                    for r in range(4):
                        a("v_mul_f32 v%d, v%d, v%d" % (TMP + r, MR + t, CS + 4 * s + r))
                    for r in range(4):
                        a("v_fma_f32 v%d, v%d, v%d, -v%d" % (TMP + r, acc + 4 * s + r, RSTD + t, TMP + r))
                def g(s=s):
                    a("v_cvt_pk_bf16_f32 v%d, v%d, v%d" % (TMP + 4 + 2 * s, TMP, TMP + 1))
                    a("v_cvt_pk_bf16_f32 v%d, v%d, v%d" % (TMP + 5 + 2 * s, TMP + 2, TMP + 3))
                    a("ds_write_b64 v%d, v[%d:%d] offset:%d" % (11 + s, TMP + 4 + 2 * s, TMP + 5 + 2 * s, t * 16 * QP)); lg.issue("w")
                ops += [f, g]
        else:
            for s in range(2):
                def f(s=s):
                    for r in range(4):
                        a("v_fma_f32 v%d, -v%d, v%d, v%d" % (TMP + r, MR + t, CS + 4 * s + r, BIAS + 4 * s + r))
                    for r in range(4):
                        a("v_fma_f32 v%d, v%d, v%d, v%d" % (TMP + r, acc + 4 * s + r, RSTD + t, TMP + r))
                def g(s=s):
                    for r in range(4):
                        a("v_max_f32 v%d, 0, v%d" % (TMP + r, TMP + r))
                    for r in range(4):
                        a("v_mul_f32 v%d, v%d, v%d" % (TMP + r, TMP + r, TMP + r))
                    o = TMP + 4 + 4 * (t % 2)
                    a("v_cvt_pk_bf16_f32 v%d, v%d, v%d" % (o + 2 * s, TMP, TMP + 1))
                    a("v_cvt_pk_bf16_f32 v%d, v%d, v%d" % (o + 1 + 2 * s, TMP + 2, TMP + 3))
                    if s == 1:
                        a("buffer_store_dwordx4 v[%d:%d], v3, s[4:7], s28 offen" % (o, o + 3)); vm.issue("hst")
                        a("s_add_u32 s28, s28, %d" % (56 * 1024))
                ops += [f, g]
        return ops
    def barrier_for(t):
        vm.wait(("x", t))
        a("s_barrier")
        if t >= 1 and t + 3 < NT: dma(t + 3)
    barrier_for(0)
    for n in range(D): ds_read(n)
    pend = []
    for n in range(NS):
        t, j = divmod(n, 20)
        nn = n + D
        if nn < NS:
            if nn % 20 == 0: barrier_for(nn // 20)
            ds_read(nn)
        lg.wait(("r", n))
        b = XB + 4 * (n % NXB)
        acc = ACC[t % 2]
        for s in range(2):
            a("v_mfma_f32_16x16x32_bf16 v[%d:%d], a[%d:%d], v[%d:%d], %s" % (
                acc + 4 * s, acc + 4 * s + 3, (s * 20 + j) * 4, (s * 20 + j) * 4 + 3, b, b + 3,
                "0" if j == 0 else "v[%d:%d]" % (acc + 4 * s, acc + 4 * s + 3)))
        if j == 4 and t >= 1: pend = epilogue_ops(t - 1)
        if pend and j >= 4 and j % 2 == 0:
            pend.pop(0)()
    for f in epilogue_ops(NT - 1): f()
    if qkv:
        lg.wait_all()
        a("s_barrier")
        gen_attention(a, layer)
    kernel_end(a, name)

def gen_attention(a, layer):
    Q = 32; K = 42; V = 122; L = 202; PL = 210; PH = 218; O = 226; T = 246
    a("v_and_b32 v6, 31, v2")
    a("v_lshrrev_b32 v7, 5, v2")
    a("s_lshl_b32 s21, s16, 5")
    a("v_add_u32 v8, s21, v6")
    a("v_mul_u32_u24 v9, %d, v8" % QP)
    a("v_mul_u32_u24 v10, 48, v7")
    a("v_add_u32 v9, v9, v10")
    a("v_add_u32 v9, %d, v9" % (QKVB + 2 * QP))
    def rd(dst, off):
        a("ds_read_b128 v[%d:%d], v9 offset:%d" % (dst, dst + 3, off))
        a("ds_read_b128 v[%d:%d], v9 offset:%d" % (dst + 4, dst + 7, off + 16))
        a("ds_read_b64 v[%d:%d], v9 offset:%d" % (dst + 8, dst + 9, off + 32))
    rd(Q, 14 * QP + 192)
    for w in range(8): rd(K + 10 * w, (14 - 2 * w) * QP)
    a("s_lshl_b32 s22, s17, 7")
    a("v_add_u32 v10, s22, v8")
    a("s_waitcnt lgkmcnt(0)")
    for w in range(8): rd(V + 10 * w, (14 - 2 * w) * QP + 96)
    for d in range(10):
        for w in range(8):
            a("v_dot2_f32_bf16 v%d, v%d, v%d, %s" % (L + w, Q + d, K + 10 * w + d, "0" if d == 0 else "v%d" % (L + w)))
    a("v_mov_b32 v%d, 0x%x" % (T, 0xCE6E6B28))
    for w in range(1, 8):
        a("v_cmp_le_u32 vcc, %d, v10" % (2 * w))
        a("v_cndmask_b32 v%d, v%d, v%d, vcc" % (L + w, T, L + w))
    a("v_max3_f32 v%d, v%d, v%d, v%d" % (T + 1, L, L + 1, L + 2))
    a("v_max3_f32 v%d, v%d, v%d, v%d" % (T + 1, T + 1, L + 3, L + 4))
    a("v_max3_f32 v%d, v%d, v%d, v%d" % (T + 1, T + 1, L + 5, L + 6))
    a("v_max_f32 v%d, v%d, v%d" % (T + 1, T + 1, L + 7))
    import math, struct
    c = (20 ** -0.5) * math.log2(math.e)
    cbits = struct.unpack("<I", struct.pack("<f", c))[0]
    a("s_mov_b32 s23, 0x%x" % cbits)
    for w in range(8):
        a("v_sub_f32 v%d, v%d, v%d" % (L + w, L + w, T + 1))
    for w in range(8):
        a("v_mul_f32 v%d, s23, v%d" % (L + w, L + w))
    for w in range(8):
        a("v_exp_f32 v%d, v%d" % (L + w, L + w))
    a("v_add_f32 v%d, v%d, v%d" % (T + 2, L, L + 1))
    a("v_add_f32 v%d, v%d, v%d" % (T + 3, L + 2, L + 3))
    a("v_add_f32 v%d, v%d, v%d" % (T + 4, L + 4, L + 5))
    a("v_add_f32 v%d, v%d, v%d" % (T + 5, L + 6, L + 7))
    a("v_add_f32 v%d, v%d, v%d" % (T + 2, T + 2, T + 3))
    a("v_add_f32 v%d, v%d, v%d" % (T + 4, T + 4, T + 5))
    a("v_add_f32 v%d, v%d, v%d" % (T + 2, T + 2, T + 4))
    a("v_rcp_f32 v%d, v%d" % (T + 2, T + 2))
    for w in range(8):
        a("v_mul_f32 v%d, v%d, v%d" % (L + w, L + w, T + 2))
    for w in range(8):
        a("v_cvt_pk_bf16_f32 v%d, v%d, 0" % (PL + w, L + w))
    for w in range(8):
        a("v_lshlrev_b32 v%d, 16, v%d" % (PH + w, PL + w))
    a("s_mul_i32 s22, s18, 40")
    a("v_mul_u32_u24 v11, 20, v7")
    a("v_add_u32 v11, s22, v11")
    a("v_lshrrev_b32 v12, 4, v10")
    a("s_mov_b32 s22, 20480")
    a("v_mul_lo_u32 v12, v12, s22")
    a("v_and_b32 v13, 15, v10")
    a("v_lshl_add_u32 v12, v13, 4, v12")
    for gi in range(5):
        a("v_add_u32 v13, %d, v11" % (4 * gi))
        a("v_lshrrev_b32 v14, 3, v13")
        a("v_lshl_add_u32 v14, v14, 8, v12")
        a("v_and_b32 v13, 4, v13")
        a("v_lshl_add_u32 v%d, v13, 1, v14" % (16 + gi))
    a("s_waitcnt lgkmcnt(0)")
    for w in range(8):
        for d in range(10):
            a("v_dot2_f32_bf16 v%d, v%d, v%d, %s" % (O + 2 * d, V + 10 * w + d, PL + w, "0" if w == 0 else "v%d" % (O + 2 * d)))
            a("v_dot2_f32_bf16 v%d, v%d, v%d, %s" % (O + 2 * d + 1, V + 10 * w + d, PH + w, "0" if w == 0 else "v%d" % (O + 2 * d + 1)))
    a("s_mov_b32 s22, %d" % OF(layer))
    for d in range(10):
        a("v_cvt_pk_bf16_f32 v%d, v%d, v%d" % (Q + d, O + 2 * d, O + 2 * d + 1))
    for gi in range(5):
        a("buffer_store_dwordx2 v[%d:%d], v%d, s[4:7], s22 offen" % (Q + 2 * gi, Q + 2 * gi + 1, 16 + gi))

def gen_ksplit(a, kind, layer):
    name = "%s%d_kernel" % (kind, layer)
    wo = kind == "wo"
    NK = 5 if wo else 14
    NJ = 20 if wo else 54
    PK = 20 if wo else 56
    WP = WOP if wo else W2P
    SRC = OF(layer) if wo else HF(layer)
    RES = XF(2 * layer) if wo else XF(2 * layer + 1)
    io = 2 * layer + 1 if wo else 2 * layer + 2
    final = (io == 4)
    common_prologue(a, name)
    srd(a, 8, 34, 640 * 2)
    srd(a, 12, 36, 2048 * 640 * 2)
    vm = Cnt(a, "vmcnt", 63)
    RING = 5 if wo else 6
    XR = 64
    ACC = 176
    RESR = 16
    BR = 28
    a("s_lshr_b32 s19, s18, 3")
    a("s_and_b32 s20, s18, 7")
    a("s_lshr_b32 s21, s20, 1")
    a("s_and_b32 s22, s20, 1")
    a("s_mul_i32 s23, s21, 10")
    a("s_mul_i32 s24, s22, 6")
    a("s_add_u32 s24, s24, s23")
    a("s_add_u32 s25, s23, 4")
    a("s_add_u32 s25, s25, s22")
    a("s_mul_i32 s26, s16, %d" % NK)
    for f in range(5):
        if f < 4: a("s_add_u32 s27, s24, %d" % f)
        else: a("s_mov_b32 s27, s25")
        a("s_mul_i32 s27, s27, %d" % NJ)
        a("s_add_u32 s27, s27, s26")
        a("s_lshl_b32 s27, s27, 10")
        a("s_add_u32 s%d, s27, %d" % (40 + f, WP))
    for i in range(4):
        a("s_add_u32 s27, s16, %d" % i)
        a("s_and_b32 s27, s27, 3")
        a("s_and_b32 s28, s27, 1")
        a("s_lshr_b32 s27, s27, 1")
        a("s_lshl_b32 s27, s27, 2")
        a("s_add_u32 s27, s27, s28")
        a("s_lshl_b32 s28, s19, 1")
        a("s_add_u32 s27, s27, s28")
        a("s_lshl_b32 s28, s17, 3")
        a("s_add_u32 s27, s27, s28")
        if i == 0: a("s_mov_b32 s29, s27")
        a("s_mul_i32 s27, s27, %d" % PK)
        a("s_add_u32 s27, s27, s26")
        a("s_lshl_b32 s27, s27, 10")
        a("s_add_u32 s%d, s27, %d" % (45 + i, SRC))
    a("s_mul_i32 s50, s21, 5")
    a("s_add_u32 s51, s50, 2")
    a("s_mul_i32 s27, s22, 3")
    a("s_add_u32 s50, s50, s27")
    a("s_mul_i32 s52, s29, 20480")
    a("s_lshl_b32 s27, s50, 10")
    a("s_add_u32 s53, s52, s27")
    a("s_lshl_b32 s27, s51, 10")
    a("s_add_u32 s54, s52, s27")
    a("s_lshl_b32 s27, s22, 3")
    a("s_add_u32 s54, s54, s27")
    a("s_add_u32 s55, s53, %d" % RES)
    a("s_add_u32 s56, s54, %d" % RES)
    a("buffer_load_dwordx4 v[%d:%d], v3, s[4:7], s55 offen" % (RESR, RESR + 3)); vm.issue("res")
    a("buffer_load_dwordx4 v[%d:%d], v3, s[4:7], s55 offen offset:1024" % (RESR + 4, RESR + 7)); vm.issue("res")
    a("buffer_load_dwordx2 v[%d:%d], v3, s[4:7], s56 offen" % (RESR + 8, RESR + 9)); vm.issue("res")
    a("v_lshlrev_b32 v7, 4, v5")
    a("s_lshl_b32 s57, s50, 6")
    a("s_lshl_b32 s58, s51, 6")
    a("s_lshl_b32 s27, s22, 3")
    a("s_add_u32 s58, s58, s27")
    if not wo:
        a("buffer_load_dwordx4 v[%d:%d], v7, s[8:11], s57 offen" % (BR, BR + 3)); vm.issue("res")
        a("buffer_load_dwordx4 v[%d:%d], v7, s[8:11], s57 offen offset:64" % (BR + 4, BR + 7)); vm.issue("res")
        a("buffer_load_dwordx2 v[%d:%d], v7, s[8:11], s58 offen" % (BR + 8, BR + 9)); vm.issue("res")
    def loads(k):
        sl = k % RING
        if not wo and k == 12:
            a("s_cmp_eq_u32 s16, 3")
            for r in range(40, 49): a("s_cselect_b32 s%d, 0x%x, s%d" % (r, BIG, r))
        for i in range(4):
            a("buffer_load_dwordx4 v[%d:%d], v3, s[4:7], s%d offen offset:%d" % (XR + sl * 16 + 4 * i, XR + sl * 16 + 4 * i + 3, 45 + i, (k % 4) * 1024)); vm.issue(("k", k))
        for f in range(5):
            a("buffer_load_dwordx4 a[%d:%d], v3, s[4:7], s%d offen offset:%d" % (sl * 20 + 4 * f, sl * 20 + 4 * f + 3, 40 + f, (k % 4) * 1024)); vm.issue(("k", k))
        if k % 4 == 3:
            for r in range(40, 49): a("s_add_u32 s%d, s%d, 4096" % (r, r))
    for k in range(min(RING, NK)): loads(k)
    for i in range(1, 4):
        a("s_add_u32 s27, s16, %d" % i)
        a("s_and_b32 s27, s27, 3")
        a("s_mul_i32 s27, s27, 15360")
        a("s_add_u32 s27, s27, %d" % ((i - 1) * 5120))
        a("v_add_u32 v%d, s27, v3" % (8 + i))
    a("s_mul_i32 s27, s16, 15360")
    a("v_add_u32 v8, s27, v3")
    for k in range(NK):
        sl = k % RING
        vm.wait(("k", k))
        for i in range(4):
            for f in range(5):
                acc = ACC + (i * 5 + f) * 4
                a("v_mfma_f32_16x16x32_bf16 v[%d:%d], a[%d:%d], v[%d:%d], %s" % (
                    acc, acc + 3, sl * 20 + 4 * f, sl * 20 + 4 * f + 3, XR + sl * 16 + 4 * i, XR + sl * 16 + 4 * i + 3,
                    "0" if k == 0 else "v[%d:%d]" % (acc, acc + 3)))
        if k + RING < NK: loads(k + RING)
    for i in range(1, 4):
        for f in range(5):
            acc = ACC + (i * 5 + f) * 4
            a("ds_write_b128 v%d, v[%d:%d] offset:%d" % (8 + i, acc, acc + 3, f * 1024))
    a("s_waitcnt lgkmcnt(0)")
    a("s_barrier")
    for s in range(3):
        for f in range(5):
            a("ds_read_b128 v[%d:%d], v8 offset:%d" % (XR + (s * 5 + f) * 4, XR + (s * 5 + f) * 4 + 3, (s * 5 + f) * 1024))
    vm.wait_all()
    for f in range(5):
        for r in range(4):
            d = 2 * f + (r >> 1)
            t = 40 + r
            if r & 1: a("v_and_b32 v%d, 0xffff0000, v%d" % (t, RESR + d))
            else: a("v_lshlrev_b32 v%d, 16, v%d" % (t, RESR + d))
            a("v_add_f32 v%d, v%d, v%d" % (ACC + 4 * f + r, ACC + 4 * f + r, t))
            if not wo:
                t = 44 + r
                if r & 1: a("v_and_b32 v%d, 0xffff0000, v%d" % (t, BR + d))
                else: a("v_lshlrev_b32 v%d, 16, v%d" % (t, BR + d))
                a("v_add_f32 v%d, v%d, v%d" % (ACC + 4 * f + r, ACC + 4 * f + r, t))
    for s in range(3):
        a("s_waitcnt lgkmcnt(%d)" % (10 - 5 * s))
        for f in range(5):
            for r in range(4):
                a("v_add_f32 v%d, v%d, v%d" % (ACC + 4 * f + r, ACC + 4 * f + r, XR + (s * 5 + f) * 4 + r))
    Y = 48
    for f in range(5):
        a("v_cvt_pk_bf16_f32 v%d, v%d, v%d" % (Y + 2 * f, ACC + 4 * f, ACC + 4 * f + 1))
        a("v_cvt_pk_bf16_f32 v%d, v%d, v%d" % (Y + 2 * f + 1, ACC + 4 * f + 2, ACC + 4 * f + 3))
    if final:
        a("v_mul_u32_u24 v12, 1280, v4")
        a("v_add_u32 v12, v12, v7")
        a("s_add_u32 s57, s57, s52")
        a("s_add_u32 s58, s58, s52")
        a("buffer_store_dwordx4 v[%d:%d], v12, s[12:15], s57 offen" % (Y, Y + 3))
        a("buffer_store_dwordx4 v[%d:%d], v12, s[12:15], s57 offen offset:64" % (Y + 4, Y + 7))
        a("buffer_store_dwordx2 v[%d:%d], v12, s[12:15], s58 offen" % (Y + 8, Y + 9))
    else:
        a("s_add_u32 s55, s53, %d" % XF(io))
        a("s_add_u32 s56, s54, %d" % XF(io))
        a("buffer_store_dwordx4 v[%d:%d], v3, s[4:7], s55 offen" % (Y, Y + 3))
        a("buffer_store_dwordx4 v[%d:%d], v3, s[4:7], s55 offen offset:1024" % (Y + 4, Y + 7))
        a("buffer_store_dwordx2 v[%d:%d], v3, s[4:7], s56 offen" % (Y + 8, Y + 9))
        a("v_mov_b32 v12, 0x%x" % ONES)
        for d in range(10):
            a("v_dot2_f32_bf16 v14, v%d, v12, %s" % (Y + d, "0" if d == 0 else "v14"))
            a("v_dot2_f32_bf16 v15, v%d, v%d, %s" % (Y + d, Y + d, "0" if d == 0 else "v15"))
        reduce_g(a, 14, 13)
        reduce_g(a, 15, 13)
        a("v_lshlrev_b32 v13, 6, v4")
        a("s_lshl_b32 s27, s29, 10")
        a("s_lshl_b32 s28, s20, 3")
        a("s_add_u32 s27, s27, s28")
        a("s_add_u32 s27, s27, %d" % ST(io))
        a("s_mov_b64 exec, 0xffff")
        a("buffer_store_dwordx2 v[14:15], v13, s[4:7], s27 offen")
    kernel_end(a, name)

def desc(name, vgpr, accum):
    return """.p2align 6
.amdhsa_kernel %s
  .amdhsa_next_free_vgpr %d
  .amdhsa_next_free_sgpr 96
  .amdhsa_accum_offset %d
  .amdhsa_group_segment_fixed_size 0
  .amdhsa_kernarg_size 88
  .amdhsa_user_sgpr_count 2
  .amdhsa_user_sgpr_kernarg_segment_ptr 1
  .amdhsa_system_sgpr_workgroup_id_x 1
.end_amdhsa_kernel""" % (name, vgpr, accum)

def main(out):
    a = Asm()
    hdr = ["; generated by dev/gen1.py",
           "; @launch kernel=pack_kernel grid=(264,1,1) block=(256,1,1) lds=40960"]
    for l in range(2):
        hdr.append("; @launch kernel=qkv%d_kernel grid=(256,1,1) block=(256,1,1) lds=146176" % l)
        hdr.append("; @launch kernel=wo%d_kernel grid=(256,1,1) block=(256,1,1) lds=61440" % l)
        hdr.append("; @launch kernel=w1%d_kernel grid=(256,1,1) block=(256,1,1) lds=102400" % l)
        hdr.append("; @launch kernel=w2%d_kernel grid=(256,1,1) block=(256,1,1) lds=61440" % l)
    a.raw('.amdgcn_target "amdgcn-amd-amdhsa--gfx950"\n.text')
    gen_pack(a)
    for l in range(2):
        gen_nsplit(a, "qkv", l)
        gen_ksplit(a, "wo", l)
        gen_nsplit(a, "w1", l)
        gen_ksplit(a, "w2", l)
    body = a.finalize()
    ds = ['.section .rodata,"a"', desc("pack_kernel", 128, 128)]
    for l in range(2):
        ds.append(desc("qkv%d_kernel" % l, 416, 256))
        ds.append(desc("wo%d_kernel" % l, 416, 256))
        ds.append(desc("w1%d_kernel" % l, 416, 256))
        ds.append(desc("w2%d_kernel" % l, 416, 256))
    open(out, "w").write("\n".join(hdr) + "\n" + body + "\n".join(ds) + "\n")
    print("pads inserted:", a.npad)

main(sys.argv[1])
```

```python
import sys, math, struct
from collections import deque
sys.path.insert(0, "dev")
from asmgen import Asm

OPTS = dict((o.split("=") + ["1"])[:2] for o in sys.argv[2:])
STAMPS = "stamps" in OPTS
def opt(k, d): return int(OPTS.get(k, d))
STF = " sc1"

WQ  = 0x0000000
WOP = 0x0280000
W1P = 0x0350000
W2P = 0x0580000
XB_ = 0x0800000; XS = 0x280000
OB_ = 0x1200000; OS = 0x280000
HB_ = 0x1800000; HS = 0x700000
SB_ = 0x2600000; SS = 0x40000
HKV = 0x2700000
HKS = 4608
ZPG = 0x2980000
CSQ = 0x2990000
CS1 = 0x2992000
FLB = 0x29A0000
HFL = FLB + 0x8000
def XF(i): return XB_ + i * XS
def ST(i): return SB_ + i * SS
WS_SIZE = 0x10000000
BIG = 0x7FF00000
ONES = 0x3F803F80
TSB = 0x8000000

class Cnt:
    def __init__(self, a, name, mx):
        self.a, self.name, self.mx, self.q = a, name, mx, []
    def issue(self, tag=None):
        self.q.append(tag)
        assert self.name != "vmcnt" or len(self.q) <= 63
    def room(self, n=1):
        if len(self.q) + n > 63:
            keep = 63 - n
            self.a("s_waitcnt vmcnt(%d)" % keep); self.q = self.q[len(self.q) - keep:]
    def wait(self, tag):
        idx = max((i for i, t in enumerate(self.q) if t == tag), default=None)
        if idx is None: return
        n = len(self.q) - 1 - idx
        self.a("s_waitcnt %s(%d)" % (self.name, min(n, self.mx)))
        if n <= self.mx: self.q = self.q[idx + 1:]
        else: self.q = self.q[len(self.q) - self.mx:]
    def wait_all(self):
        self.a("s_waitcnt %s(0)" % self.name); self.q = []

def srd(a, d, ptr_lo, size):
    a("s_mov_b32 s%d, s%d" % (d, ptr_lo))
    a("s_and_b32 s%d, s%d, 0xffff" % (d + 1, ptr_lo + 1))
    a("s_mov_b32 s%d, 0x%x" % (d + 2, size))
    a("s_mov_b32 s%d, 0x00020000" % (d + 3))

def reduce_g_lines(v, tmp, op="v_add_f32"):
    return ["v_mov_b32 v%d, v%d" % (tmp, v),
            "v_permlane16_swap_b32 v%d, v%d" % (v, tmp),
            "%s v%d, v%d, v%d" % (op, v, v, tmp),
            "v_mov_b32 v%d, v%d" % (tmp, v),
            "v_permlane32_swap_b32 v%d, v%d" % (v, tmp),
            "%s v%d, v%d, v%d" % (op, v, v, tmp)]
def interleave(*lists):
    out = []
    for i in range(max(len(l) for l in lists)):
        for l in lists:
            if i < len(l): out.append(l[i])
    return out
def R(f, b, n=4): return "%s[%d:%d]" % (f, b, b + n - 1)

def qfeat(Q):
    if Q <= 4: return 640 + 4 * Q
    if Q == 5: return 640 + 36
    if Q <= 9: return 640 + 20 + 4 * (Q - 6)
    if Q <= 14: return 4 * (Q - 10)
    if Q == 15: return None
    if Q <= 19: return 20 + 4 * (Q - 16)
    if Q == 20: return None
    if Q == 21: return 36
    return 1280 + 4 * (Q - 22)

def gen_pack(a):
    name = "pack_kernel"
    a.raw(".globl %s\n.p2align 8\n.type %s,@function\n%s:" % (name, name, name))
    a("s_cmp_ge_u32 s2, 265")
    a("s_cbranch_scc1 pack_kernel_end")
    a("s_load_dwordx4 s[20:23], s[0:1], 0")
    a("s_load_dwordx2 s[24:25], s[0:1], 16")
    a("s_load_dwordx2 s[26:27], s[0:1], 32")
    a("s_load_dwordx2 s[28:29], s[0:1], 48")
    a("s_load_dwordx2 s[30:31], s[0:1], 80")
    a("v_lshrrev_b32 v1, 6, v0")
    a("v_and_b32 v2, 63, v0")
    a("v_readfirstlane_b32 s16, v1")
    a("s_lshl_b32 s17, s2, 2")
    a("s_add_u32 s17, s17, s16")
    a("v_lshlrev_b32 v3, 4, v2")
    a("v_and_b32 v4, 3, v2")
    a("v_lshrrev_b32 v5, 2, v2")
    a("s_mov_b32 s51, 0x%x" % BIG)
    a("s_waitcnt lgkmcnt(0)")
    srd(a, 4, 30, WS_SIZE)
    a("s_cmp_eq_u32 s2, 264")
    a("s_cbranch_scc1 pack_flags")
    a("s_cmp_ge_u32 s17, 800")
    a("s_cbranch_scc1 pack_x")
    a("s_cmp_ge_u32 s17, 256")
    a("s_cbranch_scc1 pack_not_q")
    srd(a, 8, 22, 640 * 1920 * 2)
    a("s_mov_b32 s40, 3840")
    a("s_lshr_b32 s44, s17, 4")
    a("s_lshr_b32 s45, s17, 1")
    a("s_and_b32 s45, s45, 7")
    a("s_and_b32 s46, s17, 1")
    a("s_mul_i32 s47, s46, 10")
    a("s_mov_b32 s43, 10")
    a("s_lshr_b32 s42, s17, 1")
    a("s_lshl_b32 s51, s42, 6")
    a("s_add_u32 s51, s51, %d" % CSQ)
    a("s_mul_i32 s42, s42, 20")
    a("s_add_u32 s42, s42, s47")
    a("s_lshl_b32 s42, s42, 10")
    a("s_add_u32 s42, s42, %d" % WQ)
    a("s_lshr_b32 s48, s45, 1")
    a("s_lshl_b32 s48, s48, 3")
    a("s_and_b32 s49, s45, 1")
    a("s_add_u32 s48, s48, s49")
    a("v_lshlrev_b32 v7, 1, v4")
    a("v_add_u32 v7, s48, v7")
    a("v_lshlrev_b32 v8, 2, v7")
    a("v_add_u32 v6, %d, v8" % (1280 - 88))
    for lim, const, lin in ((21, 36, False), (20, None, False), (19, 20 - 64, True), (15, None, False), (14, -40, True), (9, 640 + 20 - 24, True), (5, 676, False), (4, 640, True)):
        if const is None: a("v_mov_b32 v9, 0x%x" % (BIG >> 1))
        elif lin: a("v_add_u32 v9, %d, v8" % const)
        else: a("v_mov_b32 v9, %d" % const)
        a("v_cmp_ge_u32 vcc, %d, v7" % lim)
        a("v_cndmask_b32 v6, v6, v9, vcc")
    a("s_mul_i32 s48, s44, 40")
    a("v_add_u32 v6, s48, v6")
    a("v_lshlrev_b32 v6, 1, v6")
    a("s_branch pack_w_go")
    for lbl, nxt, lim, base, ptr, size, pitch, nj, dst, cs in (
        ("pack_not_q", "pack_not_1", 480, 256, 26, 640 * 1728 * 2, 3456, 20, W1P, CS1),
        ("pack_not_1", "pack_not_o", 560, 480, 24, 640 * 640 * 2, 1280, 20, WOP, None)):
        a.label(lbl)
        a("s_cmp_ge_u32 s17, %d" % lim)
        a("s_cbranch_scc1 %s" % nxt)
        srd(a, 8, ptr, size)
        a("s_mov_b32 s40, %d" % pitch)
        a("s_sub_u32 s44, s17, %d" % base)
        a("s_lshr_b32 s45, s44, 1")
        a("s_and_b32 s46, s44, 1")
        a("s_mul_i32 s47, s46, 10")
        a("s_mov_b32 s43, 10")
        if cs is not None:
            a("s_lshl_b32 s51, s45, 6")
            a("s_add_u32 s51, s51, %d" % cs)
        a("s_mul_i32 s42, s45, %d" % nj)
        a("s_add_u32 s42, s42, s47")
        a("s_lshl_b32 s42, s42, 10")
        a("s_add_u32 s42, s42, %d" % dst)
        a("s_branch pack_w_col")
    a.label("pack_not_o")
    srd(a, 8, 28, 1728 * 640 * 2)
    a("s_mov_b32 s40, 1280")
    a("s_sub_u32 s44, s17, 560")
    a("s_mul_i32 s45, s44, 43691")
    a("s_lshr_b32 s45, s45, 18")
    a("s_mul_i32 s46, s45, 6")
    a("s_sub_u32 s46, s44, s46")
    a("s_mul_i32 s47, s46, 9")
    a("s_mov_b32 s43, 9")
    a("s_mul_i32 s42, s45, 54")
    a("s_add_u32 s42, s42, s47")
    a("s_lshl_b32 s42, s42, 10")
    a("s_add_u32 s42, s42, %d" % W2P)
    a.label("pack_w_col")
    a("s_lshr_b32 s48, s45, 1")
    a("s_lshl_b32 s48, s48, 5")
    a("s_and_b32 s49, s45, 1")
    a("s_lshl_b32 s49, s49, 2")
    a("s_add_u32 s48, s48, s49")
    a("v_lshlrev_b32 v6, 3, v4")
    a("v_add_u32 v6, s48, v6")
    a("v_lshlrev_b32 v6, 1, v6")
    a("v_mov_b32 v8, 0x%x" % BIG)
    a("v_cmp_gt_u32 vcc, s40, v6")
    a("v_cndmask_b32 v6, v8, v6, vcc")
    a.label("pack_w_go")
    a("v_mul_lo_u32 v7, v5, s40")
    a("v_add_u32 v7, v7, v6")
    a("s_lshl_b32 s48, s40, 4")
    a("v_add_u32 v8, s48, v7")
    a("s_mul_i32 s41, s47, s40")
    a("s_lshl_b32 s41, s41, 5")
    a("s_lshl_b32 s49, s40, 5")
    a("s_mul_i32 s50, s16, 10240")
    a("v_lshlrev_b32 v9, 3, v2")
    a("v_add_u32 v9, s50, v9")
    a("v_lshrrev_b32 v10, 4, v2")
    a("v_lshlrev_b32 v10, 8, v10")
    a("v_and_b32 v11, 15, v2")
    a("v_lshl_add_u32 v10, v11, 3, v10")
    a("v_add_u32 v10, s50, v10")
    for b in range(10):
        if b == 9:
            a("s_cmp_eq_u32 s43, 9")
            a("s_cselect_b32 s41, 0x%x, s41" % BIG)
        a("buffer_load_dwordx2 v[%d:%d], v7, s[8:11], s41 offen" % (16 + 4 * b, 17 + 4 * b))
        a("buffer_load_dwordx2 v[%d:%d], v8, s[8:11], s41 offen" % (18 + 4 * b, 19 + 4 * b))
        a("s_add_u32 s41, s41, s49")
    for b in range(10):
        a("s_waitcnt vmcnt(%d)" % (18 - 2 * b))
        a("ds_write_b64 v9, v[%d:%d] offset:%d" % (16 + 4 * b, 17 + 4 * b, b * 1024))
        a("ds_write_b64 v9, v[%d:%d] offset:%d" % (18 + 4 * b, 19 + 4 * b, b * 1024 + 512))
    a("s_waitcnt lgkmcnt(0)")
    for b in range(10):
        a("ds_read_b64_tr_b16 v[%d:%d], v10 offset:%d" % (64 + 4 * b, 65 + 4 * b, b * 1024))
        a("ds_read_b64_tr_b16 v[%d:%d], v10 offset:%d" % (66 + 4 * b, 67 + 4 * b, b * 1024 + 128))
    a("v_mov_b32 v12, 0x%x" % ONES)
    a("v_mov_b32 v13, 0")
    for b in range(10):
        a("s_waitcnt lgkmcnt(%d)" % min(15, 18 - 2 * b))
        if b == 9:
            a("s_cmp_eq_u32 s43, 9")
            a("s_cselect_b32 s42, 0x%x, s42" % BIG)
        a("buffer_store_dwordx4 v[%d:%d], v3, s[4:7], s42 offen" % (64 + 4 * b, 67 + 4 * b))
        a("s_add_u32 s42, s42, 1024")
        for k in range(4): a("v_dot2c_f32_bf16 v13, v%d, v12" % (64 + 4 * b + k))
    for l in reduce_g_lines(13, 14): a(l)
    a("s_lshl_b32 s50, s16, 6")
    a("v_lshlrev_b32 v14, 2, v11")
    a("v_add_u32 v15, s50, v14")
    a("ds_write_b32 v15, v13 offset:40960")
    a("s_waitcnt lgkmcnt(0)")
    a("s_barrier")
    a("v_xor_b32 v15, 64, v15")
    a("ds_read_b32 v16, v15 offset:40960")
    a("s_waitcnt lgkmcnt(0)")
    a("v_add_f32 v13, v13, v16")
    a("s_mov_b64 exec, 0xffff")
    a("buffer_store_dword v13, v14, s[4:7], s51 offen")
    a("s_branch pack_kernel_end")
    a.label("pack_x")
    srd(a, 8, 20, 2048 * 640 * 2)
    a("s_sub_u32 s44, s17, 800")
    a("s_lshr_b32 s45, s44, 1")
    a("s_and_b32 s46, s44, 1")
    a("v_and_b32 v4, 15, v2")
    a("v_lshrrev_b32 v5, 4, v2")
    a("v_mul_u32_u24 v6, 1280, v4")
    a("v_lshl_add_u32 v6, v5, 4, v6")
    a("s_mul_i32 s41, s45, 20480")
    a("s_mul_i32 s47, s46, 640")
    a("s_add_u32 s47, s47, s41")
    a("s_mul_i32 s42, s46, 10240")
    a("s_add_u32 s42, s42, s41")
    a("s_add_u32 s42, s42, %d" % XF(0))
    for b in range(10):
        a("buffer_load_dwordx4 v[%d:%d], v6, s[8:11], s47 offen offset:%d" % (16 + 4 * b, 19 + 4 * b, b * 64))
    a("v_mov_b32 v8, 0")
    a("v_mov_b32 v9, 0")
    a("v_mov_b32 v12, 0x%x" % ONES)
    for b in range(10):
        a("s_waitcnt vmcnt(%d)" % 9)
        a("buffer_store_dwordx4 v[%d:%d], v3, s[4:7], s42 offen" % (16 + 4 * b, 19 + 4 * b))
        a("s_add_u32 s42, s42, 1024")
        for k in range(4):
            a("v_dot2c_f32_bf16 v8, v%d, v12" % (16 + 4 * b + k))
            a("v_dot2c_f32_bf16 v9, v%d, v%d" % (16 + 4 * b + k, 16 + 4 * b + k))
    for l in reduce_g_lines(8, 13) + reduce_g_lines(9, 13): a(l)
    a("v_mov_b32 v10, 0")
    a("v_mov_b32 v11, 0")
    a("v_cmp_gt_u32 vcc, 16, v2")
    a("v_cndmask_b32 v8, 0, v8, vcc")
    a("v_cndmask_b32 v9, 0, v9, vcc")
    a("v_lshlrev_b32 v13, 7, v4")
    a("v_lshl_add_u32 v13, v5, 4, v13")
    a("s_lshl_b32 s42, s45, 11")
    a("s_lshl_b32 s47, s46, 6")
    a("s_add_u32 s42, s42, s47")
    a("s_add_u32 s42, s42, %d" % ST(0))
    a("buffer_store_dwordx4 v[8:11], v13, s[4:7], s42 offen")
    a("s_branch pack_kernel_end")
    a.label("pack_flags")
    a("v_lshlrev_b32 v6, 2, v0")
    for r in range(18):
        a("v_mov_b32 v7, %d" % (1 if r < 2 else 0))
        a("s_mov_b32 s42, %d" % (FLB + r * 1024))
        a("buffer_store_dword v7, v6, s[4:7], s42 offen")
    a("v_cmp_gt_u32 vcc, 16, v0")
    a("v_cndmask_b32 v7, 0, 1, vcc")
    for r in range(3):
        a("s_mov_b32 s42, %d" % (HFL + r * 1024))
        a("buffer_store_dword v7, v6, s[4:7], s42 offen")
    a("v_mov_b32 v7, 0")
    for r in range(5):
        a("s_mov_b32 s42, %d" % (ZPG + r * 1024))
        a("buffer_store_dword v7, v6, s[4:7], s42 offen")
    a.label("pack_kernel_end")
    a("s_endpgm")

SLOT = 20480; NSLOT = 5; QKVB = NSLOT * SLOT; QP = 272
STL = QKVB + 144 * QP
LDS_SIZE = STL + 1024
sWAVE, sG, sC, sP = 20, 21, 22, 23
sXO, sSO, sOO, sHO, sFO = 24, 25, 26, 27, 28
sMF0, sWPART, sWQ0, sW1, sBLK, sQ, sCT = 29, 30, 31, 32, 33, 34, 35
sFL = 36
sBP, sBC = 41, 42
sPART, sODD8, sIOWN = 43, 44, 45
sHALS, sHALF, sHALD, sHALDF = 46, 47, 48, 49
sNX = 50
sSB = 51
sT = 52
vLANE, vL16, vL16B, vFLG, vQW, vKA, vQA, vVA, vOA0, vOA1, vSTA, vG16, vM, vG4 = range(2, 16)
vRW0, vRW1, vRW2, vRW4, vRR, vSTS, vOUT, vSTL = range(16, 24)
ACC = [24, 32]; CS = 40; BIAS = 48; ET = 56; EO = 64; RS = 68; STT = 72; PT = 84
XRING = 232; NXB = 6
R2 = 96

def gen_main(a):
    name = "main_kernel"
    a.raw(".globl %s\n.p2align 8\n.type %s,@function\n%s:" % (name, name, name))
    a("s_cmp_ge_u32 s2, 256")
    a("s_cbranch_scc1 main_kernel_end")
    vm = Cnt(a, "vmcnt", 63); lg = Cnt(a, "lgkmcnt", 15)
    nst = [0]; stamp_names = []
    DBG = OPTS.get("dbg", "")
    def stamp(nm, grp=""):
        if not STAMPS: return
        if grp != DBG and nm not in ("start", "S4 done"): return
        i = nst[0]; nst[0] += 1
        assert i < 16, "too many stamps"
        stamp_names.append(nm)
        a("s_memrealtime s[%d:%d]" % (64 + 2 * i, 65 + 2 * i))

    class Sched:
        def __init__(s):
            s.q = {}; s.order = ["crit", "epi", "att", "dma", "st", "pre"]
            for n in s.order: s.q[n] = deque()
            s.tick = 0; s.last = {n: -10 ** 9 for n in s.order}
        def add(s, n, ops):
            for o in ops:
                if isinstance(o, str): o = (lambda t=o: a(t), 0)
                elif callable(o): o = (o, 0)
                s.q[n].append(o)
        def slot(s, budget):
            s.tick += 1
            for n in s.order:
                q = s.q[n]
                while budget > 0 and q and s.tick - s.last[n] >= q[0][1]:
                    fn, gap = q.popleft(); fn(); s.last[n] = s.tick; budget -= 1
                    if n == "pre": break
        def drain(s, *names):
            for n in names:
                while s.q[n]:
                    fn, gap = s.q[n].popleft(); fn(); s.last[n] = s.tick
        def empty(s, n): return not s.q[n]
    S = Sched()

    a("s_load_dwordx2 s[52:53], s[0:1], 80")
    a("s_load_dwordx2 s[54:55], s[0:1], 40")
    a("s_load_dwordx2 s[56:57], s[0:1], 56")
    a("s_load_dwordx2 s[58:59], s[0:1], 64")
    a("v_lshrrev_b32 v1, 6, v0")
    a("v_and_b32 v%d, 63, v0" % vLANE)
    a("v_readfirstlane_b32 s%d, v1" % sWAVE)
    MAP = opt("map", 1)
    a("s_and_b32 s60, s2, 7")
    a("s_lshr_b32 s61, s2, 3")
    if MAP == 0:
        a("s_lshl_b32 s%d, s60, 1" % sG)
        a("s_lshr_b32 s62, s61, 4")
        a("s_add_u32 s%d, s%d, s62" % (sG, sG))
        a("s_and_b32 s%d, s61, 15" % sC)
        a("s_lshr_b32 s%d, s%d, 3" % (sQ, sC))
        a("s_and_b32 s%d, s%d, 7" % (sCT, sC))
    else:
        a("s_lshr_b32 s%d, s60, 1" % sG)
        a("s_lshl_b32 s%d, s%d, 2" % (sG, sG))
        a("s_lshr_b32 s62, s61, 3")
        a("s_add_u32 s%d, s%d, s62" % (sG, sG))
        a("s_and_b32 s62, s60, 1")
        a("s_and_b32 s%d, s61, 7" % sC)
        a("s_lshl_b32 s63, s62, 3")
        a("s_add_u32 s%d, s%d, s63" % (sC, sC))
        a("s_and_b32 s%d, s61, 3" % sCT)
        a("s_lshl_b32 s63, s62, 2")
        a("s_add_u32 s%d, s%d, s63" % (sCT, sCT))
        a("s_lshr_b32 s%d, s61, 2" % sQ)
        a("s_and_b32 s%d, s%d, 1" % (sQ, sQ))
    a("v_lshlrev_b32 v%d, 4, v%d" % (vL16, vLANE))
    a("s_lshl_b32 s%d, s%d, 2" % (sWQ0, sC))
    a("s_add_u32 s%d, s%d, s%d" % (sWQ0, sWQ0, sWAVE))
    a("s_mul_i32 s%d, s%d, 40960" % (sWQ0, sWQ0))
    a("s_add_u32 s%d, s%d, %d" % (sWQ0, sWQ0, WQ))
    a("s_waitcnt lgkmcnt(0)")
    srd(a, 4, 52, WS_SIZE)

    def nw_load(dst, breg, idx, tag):
        j, s = divmod(idx, 2)
        a("s_add_u32 s%d, s%d, %d" % (sT + 11, breg, s * 20480 + (j // 4) * 4096))
        vm.room()
        a("buffer_load_dwordx4 %s, v%d, s[4:7], s%d offen offset:%d" % (dst, vL16, sT + 11, (j % 4) * 1024)); vm.issue(tag)
    def wq_reg(idx): return R("a", 4 * idx)
    def w1_reg(idx):
        return R("v", 255 - 3 - 4 * idx)
    for idx in range(40): nw_load(wq_reg(idx), sWQ0, idx, ("wq", idx))
    srd(a, 8, 54, 1728 * 2)
    srd(a, 12, 56, 640 * 2)
    srd(a, 16, 58, 2048 * 640 * 2)
    for r in (sP, sXO, sSO, sOO, sHO, sFO): a("s_mov_b32 s%d, 0" % r)
    a("s_lshl_b32 s%d, s%d, 3" % (sMF0, sG))
    a("s_mul_i32 s%d, s%d, 5120" % (sWPART, sWAVE))
    a("s_lshl_b32 s%d, s%d, 2" % (sBLK, sC))
    a("s_add_u32 s%d, s%d, s%d" % (sBLK, sBLK, sWAVE))
    a("s_mul_i32 s%d, s%d, 40960" % (sW1, sBLK))
    a("s_add_u32 s%d, s%d, %d" % (sW1, sW1, W1P))
    a("s_cmp_ge_u32 s%d, 14" % sC)
    a("s_cselect_b32 s%d, 0x%x, s%d" % (sW1, BIG, sW1))
    a("s_cselect_b32 s%d, 0x%x, 0" % (sNX, BIG))
    a("s_lshr_b32 s%d, s%d, 1" % (sPART, sWAVE))
    a("s_and_b32 s%d, s%d, 1" % (sIOWN, sWAVE))
    a("s_lshr_b32 s60, s%d, 1" % sCT)
    a("s_and_b32 s61, s%d, 1" % sCT)
    a("s_lshl_b32 s%d, s61, 3" % sODD8)
    a("s_mul_i32 s62, s60, 5")
    a("s_add_u32 s%d, s62, 2" % sBC)
    a("s_mul_i32 s63, s61, 3")
    a("s_add_u32 s62, s62, s63")
    a("s_add_u32 s%d, s62, s%d" % (sBP, sPART))
    a("s_xor_b32 s63, s%d, 1" % sPART)
    a("s_add_u32 s63, s62, s63")
    a("s_lshl_b32 s%d, s%d, 1" % (sFL, sBP))
    a("s_add_u32 s%d, s%d, 1" % (sFL + 1, sFL))
    a("s_lshl_b32 s%d, s63, 1" % (sFL + 2))
    a("s_add_u32 s%d, s%d, 1" % (sFL + 3, sFL + 2))
    a("s_lshl_b32 s%d, s%d, 1" % (sFL + 4, sBC))
    a("s_add_u32 s%d, s%d, s61" % (sFL + 4, sFL + 4))
    a("s_lshl_b32 s60, s%d, 4" % sG)
    a("s_add_u32 s60, s60, s%d" % sC)
    a("s_mul_i32 s%d, s60, %d" % (sHALD, HKS))
    a("s_add_u32 s%d, s%d, %d" % (sHALD, sHALD, HKV))
    a("s_sub_u32 s%d, s%d, %d" % (sHALS, sHALD, 16 * HKS))
    a("s_lshl_b32 s%d, s60, 2" % sHALF)
    a("s_add_u32 s%d, s%d, %d" % (sHALF, sHALF, HFL))
    a("s_add_u32 s%d, s%d, 64" % (sHALDF, sHALF))
    a("s_cmp_eq_u32 s%d, 0" % sG)
    a("s_cselect_b32 s%d, %d, s%d" % (sHALS, ZPG, sHALS))
    a("s_cmp_eq_u32 s%d, 15" % sG)
    a("s_cselect_b32 s%d, 0x%x, s%d" % (sHALDF, BIG, sHALDF))
    a("s_cmp_eq_u32 s%d, 0" % sG)
    a("s_cselect_b32 s60, s%d, 0" % sPART)
    a("s_cmp_eq_u32 s60, 1")
    a("s_cselect_b32 s%d, 0xf149f2ca, 0" % sSB)
    a("v_and_b32 v%d, 15, v%d" % (vM, vLANE))
    a("v_lshrrev_b32 v%d, 4, v%d" % (vG4, vLANE))
    a("v_add_u32 v%d, %d, v%d" % (vL16B, 3 * SLOT, vL16))
    a("v_lshlrev_b32 v%d, 2, v%d" % (vFLG, vM))
    a("v_lshlrev_b32 v%d, 4, v%d" % (vG16, vG4))
    a("v_lshlrev_b32 v%d, 7, v%d" % (vSTS, vM))
    a("v_lshl_add_u32 v%d, v%d, 5, v%d" % (vSTA, vG4, vSTS))
    a("v_mul_u32_u24 v%d, 1280, v%d" % (vOUT, vM))
    a("v_add_u32 v%d, v%d, v%d" % (vOUT, vOUT, vG16))
    a("v_lshlrev_b32 v%d, 3, v%d" % (vSTL, vM))
    a("v_add_u32 v%d, %d, v%d" % (vSTL, STL, vSTL))
    a("v_mul_u32_u24 v24, %d, v%d" % (QP, vM))
    a("s_lshl_b32 s60, s%d, 6" % sWAVE)
    a("s_add_u32 s60, s60, %d" % (QKVB + 16 * QP))
    a("v_add_u32 v%d, v24, v%d" % (vQW, vG16))
    a("v_add_u32 v%d, s60, v%d" % (vQW, vQW))
    a("s_mul_i32 s60, s%d, %d" % (sPART, 16 * QP))
    a("s_sub_u32 s60, %d, s60" % QKVB)
    a("s_mul_i32 s61, s%d, 48" % sIOWN)
    a("v_add_u32 v25, s61, v%d" % vG16)
    a("v_cmp_gt_u32 vcc, 2, v%d" % vG4)
    a("v_cndmask_b32 v25, 32, v25, vcc")
    a("v_add_u32 v25, v25, v24")
    a("v_add_u32 v%d, s60, v25" % vKA)
    a("s_add_u32 s61, s61, 80")
    a("v_add_u32 v25, s61, v%d" % vG16)
    a("v_add_u32 v25, v25, v24")
    a("v_add_u32 v%d, s60, v25" % vQA)
    a("v_lshrrev_b32 v25, 2, v%d" % vLANE)
    a("v_mul_u32_u24 v25, %d, v25" % QP)
    a("v_and_b32 v26, 3, v%d" % vLANE)
    a("v_lshl_add_u32 v25, v26, 3, v25")
    a("s_mul_i32 s61, s%d, 40" % sIOWN)
    a("s_add_u32 s61, s61, 176")
    a("s_add_u32 s61, s61, s60")
    a("v_add_u32 v%d, s61, v25" % vVA)
    a("s_mul_i32 s60, s%d, 40" % sC)
    a("s_mul_i32 s61, s%d, 20" % sIOWN)
    a("s_add_u32 s60, s60, s61")
    for k, dst in ((0, vOA0), (1, vOA1)):
        if k == 0:
            a("v_lshlrev_b32 v25, 2, v%d" % vG4)
            a("v_add_u32 v25, s60, v25")
        else:
            a("s_add_u32 s61, s60, 16")
            a("v_mov_b32 v25, s61")
        a("v_lshrrev_b32 v26, 3, v25")
        a("v_lshlrev_b32 v26, 8, v26")
        a("v_lshl_add_u32 v26, v%d, 4, v26" % vM)
        a("v_and_b32 v25, 4, v25")
        a("v_lshl_add_u32 v%d, v25, 1, v26" % dst)
    a("v_mov_b32 v25, 0x%x" % BIG)
    a("v_cmp_gt_u32 vcc, 16, v%d" % vLANE)
    a("v_cndmask_b32 v%d, v25, v%d, vcc" % (vOA1, vOA1))
    for x, dst in ((1, vRW0), (2, vRW1), (3, vRW2)):
        a("s_xor_b32 s60, s%d, %d" % (sWAVE, x))
        a("s_mul_i32 s60, s60, 9216")
        a("s_add_u32 s60, s60, %d" % (QKVB + (x - 1) * 3072))
        a("v_add_u32 v%d, s60, v%d" % (dst, vL16))
    a("s_cmp_eq_u32 s%d, 0" % sPART)
    a("s_cselect_b64 vcc, -1, 0")
    a("v_cndmask_b32 v%d, v%d, v%d, vcc" % (vRW4, vRW2, vRW0))
    a("s_mul_i32 s60, s%d, 9216" % sWAVE)
    a("s_add_u32 s60, s60, %d" % QKVB)
    a("v_add_u32 v%d, s60, v%d" % (vRR, vL16))

    uid = [0]
    def poll_at(addr_fn, single=False):
        u = uid[0]; uid[0] += 1
        a("s_cmp_lg_u32 s%d, 0" % sWAVE)
        a("s_cbranch_scc1 Lpd%d" % u)
        addr_fn(sT + 10)
        a("s_mov_b32 s%d, 0" % (sT + 9))
        if single: a("v_mov_b32 v%d, 0" % (PT + 1))
        a.label("Lp%d" % u)
        a("buffer_load_dword v%d, v%d, s[4:7], s%d offen sc1" % (PT, PT + 1 if single else vFLG, sT + 10))
        a("s_add_u32 s%d, s%d, 1" % (sT + 9, sT + 9))
        a("s_cmp_gt_u32 s%d, 0x100000" % (sT + 9))
        a("s_cbranch_scc1 Lpd%d" % u)
        a("s_waitcnt vmcnt(0)")
        a("v_cmp_ne_u32 vcc, 1, v%d" % PT)
        a("s_cbranch_vccnz Lp%d" % u)
        a.label("Lpd%d" % u)
    def flag_addr(k):
        def f(d):
            a("s_lshl_b32 s%d, s%d, 6" % (d, sG))
            a("s_add_u32 s%d, s%d, s%d" % (d, d, sFO))
            a("s_add_u32 s%d, s%d, %d" % (d, d, FLB + k * 1024))
        return f
    def poll(k): poll_at(flag_addr(k))
    def set_flag(addr_fn):
        u = uid[0]; uid[0] += 1
        a("s_cmp_lg_u32 s%d, 0" % sWAVE)
        a("s_cbranch_scc1 Lf%d" % u)
        addr_fn(sT + 10)
        a("v_mov_b32 v%d, 1" % PT)
        a("v_mov_b32 v%d, 0" % (PT + 1))
        a("s_mov_b64 exec, 1")
        a("buffer_store_dword v%d, v%d, s[4:7], s%d offen sc1" % (PT, PT + 1, sT + 10))
        a("s_mov_b64 exec, -1")
        a.label("Lf%d" % u)
    def my_flag(k):
        def f(d):
            flag_addr(k)(d)
            a("s_lshl_b32 s%d, s%d, 2" % (d - 1, sC))
            a("s_add_u32 s%d, s%d, s%d" % (d, d, d - 1))
        return f

    def wo_reg(n):
        if n < 18: return R("a", 160 + 4 * n)
        if n < 24: return R("a", 232 + 4 * (n - 18))
        return R("a", 120)
    def w2_reg(n):
        if n < 40: return R("a", 4 * n)
        if n < 58: return R("a", 160 + 4 * (n - 40))
        if n < 64: return R("a", 232 + 4 * (n - 58))
        return R("v", 232 + 4 * (n - 64))
    def kw_load(dst, n, NK, NJ, WP, tag):
        k, ln = divmod(n, 5)
        t = sT + 11
        a("s_mul_i32 s%d, s%d, %d" % (t, sFL + ln, NJ * 1024))
        a("s_mul_i32 s%d, s%d, %d" % (t - 3, sWAVE, NK * 1024))
        a("s_add_u32 s%d, s%d, s%d" % (t, t, t - 3))
        a("s_add_u32 s%d, s%d, %d" % (t, t, WP + k * 1024))
        if NK == 14 and k >= 12:
            a("s_cmp_eq_u32 s%d, 3" % sWAVE)
            a("s_cselect_b32 s%d, 0x%x, s%d" % (t, BIG, t))
        vm.room()
        a("buffer_load_dwordx4 %s, v%d, s[4:7], s%d offen" % (dst, vL16, t)); vm.issue(tag)

    def dma_ops(qkv, u, nextpass=False):
        xsrc = XF(0) if qkv else XF(1)
        if nextpass: xsrc += 2 * XS
        d = sT + 0
        def f0():
            a("s_mul_i32 s%d, s%d, 20480" % (d, sMF0))
            a("s_add_u32 s%d, s%d, s%d" % (d, d, sXO))
            a("s_add_u32 s%d, s%d, s%d" % (d, d, sWPART))
            if not qkv: a("s_add_u32 s%d, s%d, s%d" % (d, d, sNX))
            a("s_add_u32 s%d, s%d, %d" % (d, d, xsrc + (7 - u) * 20480))
            a("s_add_u32 m0, s%d, %d" % (sWPART, (u % NSLOT) * SLOT))
            vm.room(5)
            for k in range(4):
                a("buffer_load_dwordx4 v%d, s[4:7], s%d offen offset:%d sc1 lds" % (vL16, d, k * 1024)); vm.issue(("x", u))
            a("s_add_u32 m0, s%d, %d" % (sWPART, (u % NSLOT) * SLOT + 4096))
            a("s_add_u32 s%d, s%d, 4096" % (d, d))
            a("buffer_load_dwordx4 v%d, s[4:7], s%d offen sc1 lds" % (vL16, d)); vm.issue(("x", u))
        return [f0]
    def stats_ops(qkv, part, nextpass=False):
        ssrc = ST(0) if qkv else ST(1)
        if nextpass: ssrc += 2 * SS
        r = STT
        def ld():
            d = sT + 1
            a("s_sub_u32 s%d, s%d, s%d" % (d, sMF0, sWAVE))
            a("s_lshl_b32 s%d, s%d, 11" % (d, d))
            a("s_add_u32 s%d, s%d, s%d" % (d, d, sSO))
            a("s_add_u32 s%d, s%d, %d" % (d, d, ssrc + (7 - 4 * part) * 2048))
            vm.room(2)
            a("buffer_load_dwordx4 %s, v%d, s[4:7], s%d offen sc1" % (R("v", r), vSTA, d)); vm.issue("st")
            a("buffer_load_dwordx4 %s, v%d, s[4:7], s%d offen offset:16 sc1" % (R("v", r + 4), vSTA, d)); vm.issue("st")
        ops = [ld, (lambda: vm.wait("st"), opt("stgap", 24))]
        ops += ["v_add_f32 v%d, v%d, v%d" % (r, r, r + 2), "v_add_f32 v%d, v%d, v%d" % (r + 1, r + 1, r + 3),
                "v_add_f32 v%d, v%d, v%d" % (r + 4, r + 4, r + 6), "v_add_f32 v%d, v%d, v%d" % (r + 5, r + 5, r + 7),
                "v_add_f32 v%d, v%d, v%d" % (r, r, r + 4), "v_add_f32 v%d, v%d, v%d" % (r + 1, r + 1, r + 5)]
        ops += interleave(reduce_g_lines(r, r + 2), reduce_g_lines(r + 1, r + 3))
        ops += ["v_mul_f32 v%d, 0x3acccccd, v%d" % (r, r), "v_mul_f32 v%d, 0x3acccccd, v%d" % (r + 1, r + 1),
                "v_fma_f32 v%d, -v%d, v%d, v%d" % (r + 1, r, r, r + 1), "v_max_f32 v%d, 0, v%d" % (r + 1, r + 1),
                "v_add_f32 v%d, 0x3727c5ac, v%d" % (r + 1, r + 1), "v_rsq_f32 v%d, v%d" % (r + 2, r + 1),
                "s_lshl_b32 s%d, s%d, 7" % (sT + 1, sWAVE),
                "v_mul_f32 v%d, v%d, v%d" % (r + 3, r, r + 2), "v_add_u32 v%d, s%d, v%d" % (r + 4, sT + 1, vSTL)]
        def wr():
            a("ds_write_b64 v%d, %s offset:%d" % (r + 4, R("v", r + 2, 2), part * 512)); lg.issue("lw")
        ops.append(wr)
        return ops
    def cs_ops(qkv):
        def f():
            d = sT + 1
            if qkv:
                a("s_lshl_b32 s%d, s%d, 2" % (d, sC)); a("s_add_u32 s%d, s%d, s%d" % (d, d, sWAVE))
                a("s_lshl_b32 s%d, s%d, 7" % (d, d)); a("s_add_u32 s%d, s%d, %d" % (d, d, CSQ))
            else:
                a("s_lshl_b32 s%d, s%d, 7" % (d, sBLK)); a("s_add_u32 s%d, s%d, %d" % (d, d, CS1))
                a("s_add_u32 s%d, s%d, s%d" % (d, d, sNX))
            vm.room(3)
            a("buffer_load_dwordx4 %s, v%d, s[4:7], s%d offen" % (R("v", CS), vG16, d)); vm.issue("cs")
            a("buffer_load_dwordx4 %s, v%d, s[4:7], s%d offen offset:64" % (R("v", CS + 4), vG16, d)); vm.issue("cs")
            if not qkv:
                a("s_lshl_b32 s%d, s%d, 6" % (d, sBLK))
                a("buffer_load_dwordx4 %s, v%d, s[8:11], s%d offen" % (R("v", PT + 4), vG16, d)); vm.issue("cs")
        return [f]

    def epi_ops(qkv, u):
        acc = ACC[u % 2]; rs = RS + 2 * (u % 2)
        ops = []
        def rd():
            a("ds_read_b64 %s, v%d offset:%d" % (R("v", rs, 2), vSTL, u * 128)); lg.issue(("rs", u))
        ops.append(rd)
        def w0():
            lg.wait(("rs", u)); vm.wait("cs")
        ops.append((w0, 3))
        if not qkv and u == 0:
            for k in range(4):
                ops.append("v_lshlrev_b32 v%d, 16, v%d" % (BIAS + 2 * k, PT + 4 + k))
                ops.append("v_and_b32 v%d, 0xffff0000, v%d" % (BIAS + 2 * k + 1, PT + 4 + k))
        for i in range(8):
            if qkv: ops.append("v_mul_f32 v%d, v%d, v%d" % (ET + i, rs + 1, CS + i))
            else: ops.append("v_fma_f32 v%d, -v%d, v%d, v%d" % (ET + i, rs + 1, CS + i, BIAS + i))
        for i in range(8):
            ops.append("v_fma_f32 v%d, v%d, v%d, %sv%d" % (ET + i, acc + i, rs, "-" if qkv else "", ET + i))
        if not qkv:
            for i in range(8): ops.append("v_max_f32 v%d, 0, v%d" % (ET + i, ET + i))
            for i in range(8): ops.append("v_mul_f32 v%d, v%d, v%d" % (ET + i, ET + i, ET + i))
        for i in range(4): ops.append("v_cvt_pk_bf16_f32 v%d, v%d, v%d" % (EO + i, ET + 2 * i, ET + 2 * i + 1))
        if qkv:
            def w():
                a("ds_write_b128 v%d, %s offset:%d" % (vQW, R("v", EO), (7 - u) * 16 * QP)); lg.issue("lw")
        else:
            def w():
                d = sT + 2
                a("s_mul_i32 s%d, s%d, %d" % (d, sMF0, 57344))
                a("s_lshl_b32 s%d, s%d, 10" % (d + 1, sBLK))
                a("s_add_u32 s%d, s%d, s%d" % (d, d, d + 1))
                a("s_add_u32 s%d, s%d, s%d" % (d, d, sHO))
                a("s_add_u32 s%d, s%d, s%d" % (d, d, sNX))
                a("s_add_u32 s%d, s%d, %d" % (d, d, HB_ + (7 - u) * 57344))
                vm.room()
                a("buffer_store_dwordx4 %s, v%d, s[4:7], s%d offen%s" % (R("v", EO), vL16, d, STF)); vm.issue(("hst", u // 4))
        ops.append(w)
        return ops

    MASK = R2
    def att_setup_lines():
        L = []
        t = R2 + 8
        L.append("v_lshlrev_b32 v%d, 2, v%d" % (t, vG4))
        L.append("v_sub_u32 v%d, v%d, v%d" % (t, vM, t))
        L.append("v_mov_b32 v%d, 0xf149f2ca" % (t + 2))
        for k in range(8):
            off = (16 if k < 4 else 0) - (k & 3)
            L.append("v_add_u32 v%d, %d, v%d" % (t + 1, off, t))
            L.append("v_and_b32 v%d, 0xfffffff1, v%d" % (t + 1, t + 1))
            L.append("v_cmp_eq_u32 vcc, 0, v%d\nv_cndmask_b32 v%d, v%d, 0, vcc" % (t + 1, MASK + k, t + 2))
        return L
    c_scale = (20 ** -0.5) * math.log2(math.e)
    CBITS = struct.unpack("<I", struct.pack("<f", c_scale))[0]
    def att_ops(f, B, tag):
        Q, Kp, Kc, Sx, V0, V1, T = B, B + 4, B + 8, B + 12, B + 4, B + 8, B + 20
        P = B; O0 = B + 12; O1 = B + 16
        ro = f * 16 * QP
        ops = []
        def rdq():
            a("s_mov_b32 exec_hi, 0xffff")
            a("ds_read_b128 %s, v%d offset:%d" % (R("v", Q), vQA, ro + 16 * QP)); lg.issue((tag, "q"))
            a("s_mov_b32 exec_hi, -1")
        ops += ["v_mov_b32 v%d, 0" % (Q + i) for i in range(4)]
        ops.append(rdq)
        def rdk(dst, off):
            def g():
                a("ds_read_b128 %s, v%d offset:%d" % (R("v", dst), vKA, off)); lg.issue((tag, "k"))
            return g
        ops += [rdk(Kp, ro), rdk(Kc, ro + 16 * QP)]
        ops.append((lambda: lg.wait((tag, "k")), 4))
        ops.append("v_mfma_f32_16x16x32_bf16 %s, %s, %s, 0" % (R("v", Sx), R("v", Kp), R("v", Q)))
        ops.append("v_mfma_f32_16x16x32_bf16 %s, %s, %s, 0" % (R("v", Sx + 4), R("v", Kc), R("v", Q)))
        def rdv(dst, off):
            def g():
                a("ds_read_b64_tr_b16 %s, v%d offset:%d" % (R("v", dst, 2), vVA, off)); lg.issue((tag, "v"))
            return g
        ops.append((rdv(V0, ro), 2))
        ops += [rdv(V0 + 2, ro + 16 * QP), rdv(V1, ro + 32), rdv(V1 + 2, ro + 16 * QP + 32)]
        ops.append("s_mov_b32 s%d, 0x%x" % (sT + 4, CBITS))
        first = True
        for k in range(8):
            o = "v_fma_f32 v%d, v%d, s%d, v%d" % (Sx + k, Sx + k, sT + 4, MASK + k)
            ops.append((lambda t=o: a(t), 2) if first else o); first = False
        if f == 1:
            ops += ["v_add_f32 v%d, s%d, v%d" % (Sx + k, sSB, Sx + k) for k in range(4)]
        ops += ["v_max3_f32 v%d, v%d, v%d, v%d" % (T, Sx, Sx + 1, Sx + 2),
                "v_max3_f32 v%d, v%d, v%d, v%d" % (T + 1, Sx + 3, Sx + 4, Sx + 5),
                "v_max3_f32 v%d, v%d, v%d, v%d" % (T, T, Sx + 6, Sx + 7),
                "v_max_f32 v%d, v%d, v%d" % (T, T, T + 1)]
        ops += reduce_g_lines(T, T + 1, "v_max_f32")
        ops += ["v_sub_f32 v%d, v%d, v%d" % (Sx + k, Sx + k, T) for k in range(8)]
        ops += ["v_exp_f32 v%d, v%d" % (Sx + k, Sx + k) for k in range(8)]
        ops += ["v_cvt_pk_bf16_f32 v%d, v%d, v%d" % (P + k, Sx + 2 * k, Sx + 2 * k + 1) for k in range(4)]
        ops += ["v_add_f32 v%d, v%d, v%d" % (T, Sx, Sx + 1), "v_add_f32 v%d, v%d, v%d" % (T + 1, Sx + 2, Sx + 3),
                "v_add_f32 v%d, v%d, v%d" % (T + 2, Sx + 4, Sx + 5), "v_add_f32 v%d, v%d, v%d" % (T + 3, Sx + 6, Sx + 7),
                "v_add_f32 v%d, v%d, v%d" % (T, T, T + 1), "v_add_f32 v%d, v%d, v%d" % (T + 2, T + 2, T + 3),
                "v_add_f32 v%d, v%d, v%d" % (T, T, T + 2)]
        ops.append(lambda: lg.wait((tag, "v")))
        ops.append("v_mfma_f32_16x16x32_bf16 %s, %s, %s, 0" % (R("v", O0), R("v", V0), R("v", P)))
        ops.append("v_mfma_f32_16x16x32_bf16 %s, %s, %s, 0" % (R("v", O1), R("v", V1), R("v", P)))
        ops += reduce_g_lines(T, T + 1)
        ops.append("v_rcp_f32 v%d, v%d" % (T, T))
        ops += ["v_mul_f32 v%d, v%d, v%d" % (O0 + k, O0 + k, T) for k in range(8)]
        ops += ["v_cvt_pk_bf16_f32 v%d, v%d, v%d" % (P + k, O0 + 2 * k, O0 + 2 * k + 1) for k in range(4)]
        def st():
            d = sT + 5
            a("s_sub_u32 s%d, s%d, s%d" % (d, sMF0, sPART))
            a("s_mul_i32 s%d, s%d, 20480" % (d, d))
            a("s_add_u32 s%d, s%d, s%d" % (d, d, sOO))
            a("s_add_u32 s%d, s%d, %d" % (d, d, OB_ + f * 20480))
            vm.room(2)
            a("buffer_store_dwordx2 %s, v%d, s[4:7], s%d offen%s" % (R("v", P, 2), vOA0, d, STF)); vm.issue(("ost", 0 if f >= 5 else 1))
            a("buffer_store_dwordx2 %s, v%d, s[4:7], s%d offen%s" % (R("v", P + 2, 2), vOA1, d, STF)); vm.issue(("ost", 0 if f >= 5 else 1))
        ops.append(st)
        return ops

    def halo_out_ops():
        t = STT + 8
        def rd():
            a("s_lshl_b32 s%d, s%d, 10" % (sT + 6, sWAVE))
            a("v_add_u32 v%d, s%d, v%d" % (PT + 2, sT + 6, vL16))
            a("s_lshl_b32 s%d, s%d, 6" % (sT + 6, sWAVE))
            a("v_add_u32 v%d, s%d, v%d" % (PT + 3, sT + 6, vL16))
            a("v_add_u32 v%d, %d, v%d" % (PT + 8, QKVB + 128 * QP, PT + 2))
            a("v_add_u32 v%d, %d, v%d" % (PT + 9, QKVB + 128 * QP + 4096, PT + 3))
            a("ds_read_b128 %s, v%d" % (R("v", t), PT + 8)); lg.issue("hr")
            a("s_mov_b64 exec, 0xf")
            a("ds_read_b128 %s, v%d" % (R("v", PT + 4), PT + 9)); lg.issue("hr")
            a("s_mov_b64 exec, -1")
        def st():
            lg.wait("hr")
            a("s_mul_i32 s%d, s%d, %d" % (sT + 6, sP, 256 * HKS))
            a("s_add_u32 s%d, s%d, s%d" % (sT + 6, sT + 6, sHALD))
            vm.room(2)
            a("buffer_store_dwordx4 %s, v%d, s[4:7], s%d offen sc1" % (R("v", t), PT + 2, sT + 6)); vm.issue("hkv")
            a("s_add_u32 s%d, s%d, 4096" % (sT + 6, sT + 6))
            a("s_mov_b64 exec, 0xf")
            a("buffer_store_dwordx4 %s, v%d, s[4:7], s%d offen sc1" % (R("v", PT + 4), PT + 3, sT + 6)); vm.issue("hkv")
            a("s_mov_b64 exec, -1")
        return [rd, (st, 4)]
    def halo_in():
        d = sT + 6
        a("s_mul_i32 s%d, s%d, %d" % (d, sP, 256 * HKS))
        a("s_cmp_eq_u32 s%d, 0" % sG)
        a("s_cselect_b32 s%d, 0, s%d" % (d, d))
        a("s_add_u32 s%d, s%d, s%d" % (d, d, sHALS))
        a("s_lshl_b32 s%d, s%d, 10" % (d + 1, sWAVE))
        a("s_add_u32 s%d, s%d, s%d" % (d + 2, d, d + 1))
        a("s_add_u32 m0, s%d, %d" % (d + 1, QKVB))
        vm.room(2)
        a("buffer_load_dwordx4 v%d, s[4:7], s%d offen sc1 lds" % (vL16, d + 2)); vm.issue("hin")
        a("s_lshl_b32 s%d, s%d, 6" % (d + 1, sWAVE))
        a("s_add_u32 s%d, s%d, s%d" % (d + 2, d, d + 1))
        a("s_add_u32 s%d, s%d, 4096" % (d + 2, d + 2))
        a("s_add_u32 m0, s%d, %d" % (d + 1, QKVB + 4096))
        a("s_mov_b64 exec, 0xf")
        a("buffer_load_dwordx4 v%d, s[4:7], s%d offen sc1 lds" % (vL16, d + 2)); vm.issue("hin")
        a("s_mov_b64 exec, -1")
    def halo_flag_src(d):
        a("s_lshl_b32 s%d, s%d, 10" % (d, sP)); a("s_add_u32 s%d, s%d, s%d" % (d, d, sHALF))
    def halo_flag_dst(d):
        a("s_lshl_b32 s%d, s%d, 10" % (d, sP)); a("s_add_u32 s%d, s%d, s%d" % (d, d, sHALDF))

    D = 5
    def x_read(n):
        u, j = divmod(n, 20)
        slot = u % NSLOT
        b = R("a", XRING + 4 * (n % NXB))
        if slot < 3: a("ds_read_b128 %s, v%d offset:%d" % (b, vL16, slot * SLOT + j * 1024))
        else: a("ds_read_b128 %s, v%d offset:%d" % (b, vL16B, (slot - 3) * SLOT + j * 1024))
        lg.issue(("r", n))

    def nstage(qkv, hooks_pre, hooks_post, pre_list, pre_end):
        wreg = wq_reg if qkv else w1_reg
        wtag = "wq" if qkv else "w1"
        def barrier_for(u):
            S.drain("epi")
            g = "n1" if qkv else "n3"
            if u in (0, 2, 3, 4, 6): stamp("b%d in" % u, g)
            for h in hooks_pre.get(u, []): h()
            lg.wait("lw")
            vm.wait(("x", u))
            if u in (0, 2, 3, 4): stamp("b%d xw" % u, g)
            a("s_barrier")
            if u in (0, 2, 3, 4, 6): stamp("b%d out" % u, g)
            for h in hooks_post.get(u, []): h()
        barrier_for(0)
        for n in range(D): x_read(n)
        npre = len(pre_list)
        S.add("pre", [(p, max(1, int(2 * pre_end / max(1, npre)))) for p in pre_list])
        for n in range(160):
            u, j = divmod(n, 20)
            nn = n + D
            busy = 0
            if nn < 160:
                if nn % 20 == 0: barrier_for(nn // 20)
                x_read(nn); busy = 1
            if n % 2 == 0 or True:
                lg.wait(("r", n))
            if u == 0: vm.wait((wtag, 2 * j + 1))
            b = R("a", XRING + 4 * (n % NXB))
            acc = ACC[u % 2]
            for s in range(2):
                a("v_mfma_f32_16x16x32_bf16 %s, %s, %s, %s" % (R("v", acc + 4 * s), wreg(2 * j + s), b, "0" if j == 0 else R("v", acc + 4 * s)))
                S.slot(opt("b0", 2) if s == 0 else opt("b1", 1))
            if j == 2 and u >= 1: S.add("epi", epi_ops(qkv, u - 1))
            if j == 19: S.drain("crit", "epi")
        S.add("epi", epi_ops(qkv, 7))

    def k_addr(wo, half):
        NK = 5 if wo else 14; PK = 20 if wo else 56
        for lm in range(2):
            d = 96 + 2 * half + lm
            a("s_xor_b32 s%d, s%d, %d" % (d, sIOWN, lm))
            a("s_lshl_b32 s%d, s%d, 1" % (sT + 7, sQ))
            a("s_add_u32 s%d, s%d, s%d" % (d, d, sT + 7))
            a("s_add_u32 s%d, s%d, s%d" % (d, d, sMF0))
            a("s_add_u32 s%d, s%d, %d" % (d, d, 4 if half == 0 else 0))
            a("s_mul_i32 s%d, s%d, %d" % (d, d, PK * 1024))
            a("s_mul_i32 s%d, s%d, %d" % (sT + 7, sWAVE, NK * 1024))
            a("s_add_u32 s%d, s%d, s%d" % (d, d, sT + 7))
            a("s_add_u32 s%d, s%d, s%d" % (d, d, sOO if wo else sHO))
            a("s_add_u32 s%d, s%d, %d" % (d, d, OB_ if wo else HB_))
    def own_mf(d, half):
        a("s_lshl_b32 s%d, s%d, 1" % (d, sQ))
        a("s_add_u32 s%d, s%d, s%d" % (d, d, sIOWN))
        a("s_add_u32 s%d, s%d, s%d" % (d, d, sMF0))
        if half == 0: a("s_add_u32 s%d, s%d, 4" % (d, d))
    def kacc(wo, half, lm, ln):
        if wo: return ("a", 40 * half + (lm * 5 + ln) * 4)
        return ("v", R2 + 40 * half + (lm * 5 + ln) * 4)
    def init_ops(wo, half, T):
        RES = XF(0) if wo else XF(1)
        RR, BR = T, T + 6
        def ld():
            d = sT + 7
            own_mf(d, half)
            a("s_mul_i32 s%d, s%d, 20480" % (d, d))
            a("s_add_u32 s%d, s%d, s%d" % (d, d, sXO))
            a("s_add_u32 s%d, s%d, %d" % (d, d, RES))
            a("s_lshl_b32 s%d, s%d, 10" % (d + 1, sBP))
            a("s_add_u32 s%d, s%d, s%d" % (d + 1, d + 1, d))
            vm.room(4)
            a("buffer_load_dwordx4 %s, v%d, s[4:7], s%d offen sc1" % (R("v", RR), vL16, d + 1)); vm.issue("res")
            a("s_lshl_b32 s%d, s%d, 10" % (d + 1, sBC))
            a("s_add_u32 s%d, s%d, s%d" % (d + 1, d + 1, d))
            a("s_add_u32 s%d, s%d, s%d" % (d + 1, d + 1, sODD8))
            a("s_cmp_eq_u32 s%d, 1" % sPART)
            a("s_cselect_b32 s%d, 0x%x, s%d" % (d + 1, BIG, d + 1))
            a("buffer_load_dwordx2 %s, v%d, s[4:7], s%d offen sc1" % (R("v", RR + 4, 2), vL16, d + 1)); vm.issue("res")
            if not wo:
                a("s_lshl_b32 s%d, s%d, 6" % (d + 1, sBP))
                a("buffer_load_dwordx4 %s, v%d, s[12:15], s%d offen" % (R("v", BR), vG16, d + 1)); vm.issue("res")
                a("s_lshl_b32 s%d, s%d, 6" % (d + 1, sBC))
                a("s_add_u32 s%d, s%d, s%d" % (d + 1, d + 1, sODD8))
                a("s_cmp_eq_u32 s%d, 1" % sPART)
                a("s_cselect_b32 s%d, 0x%x, s%d" % (d + 1, BIG, d + 1))
                a("buffer_load_dwordx2 %s, v%d, s[12:15], s%d offen" % (R("v", BR + 4, 2), vG16, d + 1)); vm.issue("res")
        ops = [ld, (lambda: vm.wait("res"), opt("resgap", 24))]
        for x, ln in enumerate((0, 1, 4)):
            f, b = kacc(wo, half, 0, ln)
            for r in range(4):
                dd = 2 * x + (r >> 1)
                un = "v_and_b32 v%d, 0xffff0000, v%d" if r & 1 else "v_lshlrev_b32 v%d, 16, v%d"
                if wo:
                    t = T + 12 + (x * 4 + r) % 4
                    ops += [un % (t, RR + dd), "v_accvgpr_write_b32 a%d, v%d" % (b + r, t)]
                else:
                    t = T + 12 + (x * 4 + r) % 4
                    ops += [un % (b + r, RR + dd), un % (t, BR + dd), "v_add_f32 v%d, v%d, v%d" % (b + r, b + r, t)]
        return ops
    def red_write_ops(wo, half):
        ops = []
        def w(addr, lm, ln, pos):
            f, b = kacc(wo, half, lm, ln)
            def g():
                a("ds_write_b128 v%d, %s offset:%d" % (addr, R(f, b), pos * 1024)); lg.issue("lw")
            return g
        ops += [w(vRW0, 1, 0, 0), w(vRW0, 1, 1, 1), w(vRW1, 0, 2, 0), w(vRW1, 0, 3, 1), w(vRW2, 1, 2, 0), w(vRW2, 1, 3, 1),
                w(vRW1, 0, 4, 2), w(vRW4, 1, 4, 2)]
        return ops
    def red_finish_ops(wo, half, T, final_ok):
        OWN = T; PR = T + 12; Y = T + 48; Z = T + 54
        ops = []
        def rd(s, pos):
            def g():
                a("ds_read_b128 %s, v%d offset:%d" % (R("v", PR + (s * 3 + pos) * 4), vRR, s * 3072 + pos * 1024)); lg.issue(("pr", s))
            return g
        for s in range(3):
            for pos in range(3): ops.append(rd(s, pos))
        own = []
        for x, ln in enumerate((0, 1, 4)):
            f, b = kacc(wo, half, 0, ln)
            for r in range(4):
                if wo:
                    ops.append("v_accvgpr_read_b32 v%d, a%d" % (OWN + 4 * x + r, b + r)); own.append(OWN + 4 * x + r)
                else: own.append(b + r)
        for s in range(3):
            ops.append(lambda s=s: lg.wait(("pr", s)))
            for i in range(12): ops.append("v_add_f32 v%d, v%d, v%d" % (own[i], own[i], PR + s * 12 + i))
        for i in range(6): ops.append("v_cvt_pk_bf16_f32 v%d, v%d, v%d" % (Y + i, own[2 * i], own[2 * i + 1]))
        ops.append("s_add_u32 s%d, s%d, -1\nv_and_b32 v%d, s%d, v%d\nv_and_b32 v%d, s%d, v%d" % (sT + 8, sPART, Y + 4, sT + 8, Y + 4, Y + 5, sT + 8, Y + 5))
        DST = XF(1) if wo else XF(2); DSTS = ST(1) if wo else ST(2)
        tag = ("xst", half)
        def st():
            d = sT + 7
            u = uid[0]; uid[0] += 1
            own_mf(d, half)
            a("s_mul_i32 s%d, s%d, 20480" % (d + 1, d))
            vm.room(2)
            if final_ok:
                a("s_cmp_eq_u32 s%d, 0" % sP)
                a("s_cbranch_scc1 Lnf%d" % u)
                a("s_lshl_b32 s%d, s%d, 6" % (d, sBP))
                a("s_add_u32 s%d, s%d, s%d" % (d, d, d + 1))
                a("buffer_store_dwordx4 %s, v%d, s[16:19], s%d offen" % (R("v", Y), vOUT, d))
                a("s_lshl_b32 s%d, s%d, 6" % (d, sBC))
                a("s_add_u32 s%d, s%d, s%d" % (d, d, d + 1))
                a("s_add_u32 s%d, s%d, s%d" % (d, d, sODD8))
                a("s_cmp_eq_u32 s%d, 1" % sPART)
                a("s_cselect_b32 s%d, 0x%x, s%d" % (d, BIG, d))
                a("buffer_store_dwordx2 %s, v%d, s[16:19], s%d offen" % (R("v", Y + 4, 2), vOUT, d))
                a("s_branch Lnfd%d" % u)
                a.label("Lnf%d" % u)
            a("s_add_u32 s%d, s%d, s%d" % (d + 1, d + 1, sXO))
            a("s_add_u32 s%d, s%d, %d" % (d + 1, d + 1, DST))
            a("s_lshl_b32 s%d, s%d, 10" % (d, sBP))
            a("s_add_u32 s%d, s%d, s%d" % (d, d, d + 1))
            a("buffer_store_dwordx4 %s, v%d, s[4:7], s%d offen%s" % (R("v", Y), vL16, d, STF)); vm.issue(tag)
            a("s_lshl_b32 s%d, s%d, 10" % (d, sBC))
            a("s_add_u32 s%d, s%d, s%d" % (d, d, d + 1))
            a("s_add_u32 s%d, s%d, s%d" % (d, d, sODD8))
            a("s_cmp_eq_u32 s%d, 1" % sPART)
            a("s_cselect_b32 s%d, 0x%x, s%d" % (d, BIG, d))
            a("buffer_store_dwordx2 %s, v%d, s[4:7], s%d offen%s" % (R("v", Y + 4, 2), vL16, d, STF)); vm.issue(tag)
            if final_ok: a.label("Lnfd%d" % u)
        ops.append(st)
        ops += ["v_mov_b32 v%d, 0x%x" % (Z + 2, ONES), "v_mov_b32 v%d, 0" % Z, "v_mov_b32 v%d, 0" % (Z + 1)]
        for i in range(6):
            ops += ["v_dot2c_f32_bf16 v%d, v%d, v%d" % (Z, Y + i, Z + 2), "v_dot2c_f32_bf16 v%d, v%d, v%d" % (Z + 1, Y + i, Y + i)]
        ops += interleave(reduce_g_lines(Z, Z + 2), reduce_g_lines(Z + 1, Z + 3))
        def sst():
            d = sT + 7
            own_mf(d, half)
            a("s_lshl_b32 s%d, s%d, 11" % (d, d))
            a("s_lshl_b32 s%d, s%d, 4" % (d + 1, sCT))
            a("s_add_u32 s%d, s%d, s%d" % (d, d, d + 1))
            a("s_lshl_b32 s%d, s%d, 3" % (d + 1, sPART))
            a("s_add_u32 s%d, s%d, s%d" % (d, d, d + 1))
            a("s_add_u32 s%d, s%d, s%d" % (d, d, sSO))
            a("s_add_u32 s%d, s%d, %d" % (d, d, DSTS))
            vm.room()
            a("s_mov_b64 exec, 0xffff")
            a("buffer_store_dwordx2 %s, v%d, s[4:7], s%d offen%s" % (R("v", Z, 2), vSTS, d, STF)); vm.issue(tag)
            a("s_mov_b64 exec, -1")
        ops.append(sst)
        return ops
    def bar():
        lg.wait("lw"); a("s_barrier")
    def publish_ops(tag, k, gap):
        def f():
            vm.wait(tag); a("s_barrier"); set_flag(my_flag(k))
        return [(f, gap)]

    def kx_reg(wo, kk, lm):
        if wo: return R("a", 80 + ((kk % 5) * 2 + lm) * 4)
        return R("v", 176 + ((kk % 7) * 2 + lm) * 4)
    def kx_load(wo, kk):
        NK = 5 if wo else 14
        half, k = divmod(kk, NK)
        vm.room(2)
        for lm in range(2):
            r = 96 + 2 * half + lm
            if k >= 4:
                a("s_add_u32 s%d, s%d, %d" % (sT + 7, r, (k // 4) * 4096)); r = sT + 7
                if not wo and k >= 12:
                    a("s_cmp_eq_u32 s%d, 3" % sWAVE)
                    a("s_cselect_b32 s%d, 0x%x, s%d" % (r, BIG, r))
            a("buffer_load_dwordx4 %s, v%d, s[4:7], s%d offen offset:%d sc1" % (kx_reg(wo, kk, lm), vL16, r, (k % 4) * 1024)); vm.issue(("kx", kk))
    def k_mfmas(wo, kk, budget):
        NK = 5 if wo else 14
        half, k = divmod(kk, NK)
        vm.wait(("kx", kk))
        if half == 0: vm.wait(("wo" if wo else "w2", k))
        for lm in range(2):
            for ln in range(5):
                f, b = kacc(wo, half, lm, ln)
                w = wo_reg(k * 5 + ln) if wo else w2_reg(k * 5 + ln)
                init0 = (k == 0) and not (lm == 0 and ln in (0, 1, 4))
                a("v_mfma_f32_16x16x32_bf16 %s, %s, %s, %s" % (R(f, b), w, kx_reg(wo, kk, lm), "0" if init0 else R(f, b)))
                S.slot(budget)

    for u in range(4):
        for f in dma_ops(True, u): f()
    S.add("st", cs_ops(True) + stats_ops(True, 0))
    stamp("start")
    a.label("Lpass")
    S.add("att", att_setup_lines())
    pre = [lambda n=n: kw_load(wo_reg(n), n, 5, 20, WOP, ("wo", n // 5)) for n in range(18)]
    pre += [lambda i=i: nw_load(w1_reg(i), sW1, i, ("w1", i)) for i in range(26)]
    PB_AT = opt("s1pb", 3)
    hp, hq = {}, {}
    hp[1] = [lambda: S.drain("st")]
    hp.setdefault(PB_AT, []).append(lambda: poll(1))
    hq.setdefault(PB_AT, []).append(lambda: (S.add("dma", sum([dma_ops(True, u) for u in range(4, PB_AT + 4)], [])), S.add("st", stats_ops(True, 1))))
    if PB_AT < 4: hq.setdefault(4, []).append(lambda: S.add("dma", dma_ops(True, 7)))
    if PB_AT == 4: hq[4].append(lambda: (S.drain("dma"), vm.wait(("x", 4)), a("s_barrier")))
    hp.setdefault(5, []).append(lambda: S.drain("st"))
    for u in range(4, 8): hp.setdefault(u, []).append(lambda: S.drain("dma"))
    hq.setdefault(2, []).append(lambda: S.add("att", halo_out_ops()))
    hp.setdefault(4, []).append(lambda: (S.drain("att"), vm.wait("hkv")))
    hq.setdefault(4, []).append(lambda: (set_flag(halo_flag_dst), S.add("att", att_ops(7, R2 + 8, "a7"))))
    hq.setdefault(6, []).append(lambda: S.add("att", att_ops(5, R2 + 32, "a5")))
    hp.setdefault(7, []).append(lambda: poll_at(halo_flag_src, single=True))
    hq.setdefault(7, []).append(halo_in)
    nstage(True, hp, hq, pre, 130)
    stamp("S1 gemm")
    S.drain("att")
    S.drain("epi")
    S.drain("pre")
    for n in range(18, 25): kw_load(wo_reg(n), n, 5, 20, WOP, ("wo", n // 5))
    k_addr(True, 0); k_addr(True, 1)
    vm.wait("hin"); vm.wait(("ost", 0))
    bar()
    set_flag(my_flag(2))
    stamp("S1 PA")
    S.add("att", interleave(att_ops(3, R2 + 8, "a3"), att_ops(1, R2 + 32, "a1")))
    S.drain("att")
    S.add("crit", init_ops(True, 0, 24) + init_ops(True, 1, 48))
    S.drain("crit")
    vm.wait(("ost", 1))
    a("s_barrier")
    set_flag(my_flag(3))
    stamp("S1 PB")
    S.add("pre", [(lambda i=i: nw_load(w1_reg(i), sW1, i, ("w1", i)), 3) for i in range(26, 40)])
    poll(2); a("s_barrier")
    stamp("S2 polled")
    for kk in range(5): kx_load(True, kk)
    for kk in range(5): k_mfmas(True, kk, 1)
    stamp("S2 A")
    poll(3); a("s_barrier")
    for kk in range(5, 10): kx_load(True, kk)
    S.add("crit", red_write_ops(True, 0) + [bar] + red_finish_ops(True, 0, 24, False))
    S.drain("crit")
    S.add("crit", publish_ops(("xst", 0), 4, opt("pubgap", 30)))
    for kk in range(5, 10): k_mfmas(True, kk, 2)
    S.drain("crit")
    stamp("S2 B")
    S.add("crit", red_write_ops(True, 1) + [bar] + red_finish_ops(True, 1, 24, False))
    S.drain("crit"); S.drain("pre")
    S.add("st", cs_ops(False))
    S.drain("st")
    vm.wait(("xst", 1)); a("s_barrier"); set_flag(my_flag(5))
    stamp("S2 done")
    poll(4); a("s_barrier")
    stamp("S3 polled")
    for u in range(4):
        for f in dma_ops(False, u): f()
    S.add("st", stats_ops(False, 0))
    pre = [lambda n=n: kw_load(w2_reg(n), n, 14, 54, W2P, ("w2", n // 5)) for n in range(58)]
    PB3 = opt("s3pb", 3)
    hp, hq = {}, {}
    hp[1] = [lambda: S.drain("st")]
    hp.setdefault(PB3, []).append(lambda: poll(5))
    hq.setdefault(PB3, []).append(lambda: (S.add("dma", sum([dma_ops(False, u) for u in range(4, PB3 + 4)], [])), S.add("st", stats_ops(False, 1))))
    if PB3 < 4: hq.setdefault(4, []).append(lambda: S.add("dma", dma_ops(False, 7)))
    if PB3 == 4: hq[4].append(lambda: (S.drain("dma"), vm.wait(("x", 4)), a("s_barrier")))
    hp.setdefault(5, []).append(lambda: S.drain("st"))
    for u in range(4, 8): hp.setdefault(u, []).append(lambda: S.drain("dma"))
    hp.setdefault(6, []).append(lambda: vm.wait(("hst", 0)))
    hq.setdefault(6, []).append(lambda: set_flag(my_flag(6)))
    nstage(False, hp, hq, pre, 140)
    stamp("S3 gemm")
    S.drain("epi"); S.drain("pre")
    for n in range(58, 70): kw_load(w2_reg(n), n, 14, 54, W2P, ("w2", n // 5))
    k_addr(False, 0); k_addr(False, 1)
    S.add("crit", init_ops(False, 0, 24)); S.drain("crit")
    vm.wait(("hst", 1)); a("s_barrier"); set_flag(my_flag(7))
    poll(6); a("s_barrier")
    stamp("S4 polled")
    for kk in range(7): kx_load(False, kk)
    S.add("epi", init_ops(False, 1, 48))
    a("s_cmp_eq_u32 s%d, 0" % sP)
    a("s_cselect_b32 s%d, s%d, 0x%x" % (sT + 3, sWQ0, BIG))
    PB4 = opt("s4pb", 7)
    PX4 = opt("s4px", 10)
    for kk in range(28):
        if kk == PB4:
            poll(7); a("s_barrier")
            for k2 in range(14, min(PB4 + 7, 28)): kx_load(False, k2)
        if kk == 14:
            stamp("S4 A")
            S.drain("crit", "epi")
            S.add("crit", red_write_ops(False, 0) + [bar] + red_finish_ops(False, 0, 24, True) + publish_ops(("xst", 0), 8, opt("pubgap", 30)))
        if kk == 14 + PX4:
            S.drain("crit")
            u2 = uid[0]; uid[0] += 1
            a("s_cmp_lg_u32 s%d, 0" % sP)
            a("s_cbranch_scc1 Lskx%d" % u2)
            poll(8)
            a.label("Lskx%d" % u2)
            a("s_barrier")
            for u in range(4): S.add("dma", dma_ops(True, u, nextpass=True))
        k_mfmas(False, kk, 2)
        nk = kk + 7
        if nk < 28 and (nk < 14 or kk >= PB4): kx_load(False, nk)
        if kk >= 14 and kk - 14 < 8:
            k = kk - 14
            S.add("pre", [lambda i=i: nw_load(wq_reg(i), sT + 3, i, ("wq", i)) for i in range(5 * k, 5 * k + 5)])
    stamp("S4 B")
    S.drain("dma"); S.drain("pre")
    S.add("crit", red_write_ops(False, 1) + [bar] + red_finish_ops(False, 1, 176, True))
    S.drain("crit")
    a("s_cmp_lg_u32 s%d, 0" % sP)
    a("s_cbranch_scc1 Lfinish")
    vm.wait(("xst", 1)); a("s_barrier"); set_flag(my_flag(9))
    stamp("S4 done")
    def dump(which):
        if not STAMPS: return
        a("s_waitcnt lgkmcnt(0)")
        a("s_mov_b64 exec, 1")
        n = nst[0]
        a("s_lshl_b32 s%d, s2, 2" % sT)
        a("s_add_u32 s%d, s%d, s%d" % (sT, sT, sWAVE))
        a("s_lshl_b32 s%d, s%d, 7" % (sT, sT))
        a("s_add_u32 s%d, s%d, %d" % (sT, sT, TSB + which * 64))
        a("v_mov_b32 v176, 0")
        for i in range(16):
            a("v_mov_b32 v%d, %s" % (180 + i, ("s%d" % (64 + 2 * i)) if i < n else "0"))
        for q in range(4):
            a("buffer_store_dwordx4 %s, v176, s[4:7], s%d offen offset:%d" % (R("v", 180 + 4 * q), sT, q * 16))
        a("s_mov_b64 exec, -1")
    dump(0)
    assert all(S.empty(n) for n in S.order)
    a("s_mov_b32 s%d, 1" % sP)
    a("s_mov_b32 s%d, %d" % (sXO, 2 * XS))
    a("s_mov_b32 s%d, %d" % (sSO, 2 * SS))
    a("s_mov_b32 s%d, %d" % (sOO, OS))
    a("s_mov_b32 s%d, %d" % (sHO, HS))
    a("s_mov_b32 s%d, %d" % (sFO, 8192))
    a("s_nop 7")
    a("s_branch Lpass")
    a.label("Lfinish")
    if STAMPS:
        a("s_waitcnt vmcnt(0)")
        a("s_memrealtime s[%d:%d]" % (64 + 2 * (nst[0] - 1), 65 + 2 * (nst[0] - 1)))
        dump(1)
    a.label("main_kernel_end")
    a("s_endpgm")
    return stamp_names

def desc(name, vgpr, accum):
    return """.p2align 6
.amdhsa_kernel %s
  .amdhsa_next_free_vgpr %d
  .amdhsa_next_free_sgpr 102
  .amdhsa_accum_offset %d
  .amdhsa_group_segment_fixed_size 0
  .amdhsa_kernarg_size 88
  .amdhsa_user_sgpr_count 2
  .amdhsa_user_sgpr_kernarg_segment_ptr 1
  .amdhsa_system_sgpr_workgroup_id_x 1
.end_amdhsa_kernel""" % (name, vgpr, accum)

def main(out):
    a = Asm()
    hdr = ["; generated by dev/gen3.py",
           "; @launch kernel=pack_kernel grid=(265,1,1) block=(256,1,1) lds=41216",
           "; @launch kernel=main_kernel grid=(256,1,1) block=(256,1,1) lds=%d" % LDS_SIZE]
    a.raw('.amdgcn_target "amdgcn-amd-amdhsa--gfx950"\n.text')
    gen_pack(a)
    names = gen_main(a)
    body = a.finalize()
    ds = ['.section .rodata,"a"', desc("pack_kernel", 128, 128), desc("main_kernel", 512, 256)]
    open(out, "w").write("\n".join(hdr) + "\n" + body + "\n".join(ds) + "\n")
    open(out + ".names", "w").write(repr(names))
    print("pads inserted:", a.npad, "lines:", body.count("\n"))

main(sys.argv[1])
```
